```python
import torch

def _softmax(x, axis=-1):
    return torch.softmax(x, dim=axis)
def _gelu(x):
    return torch.nn.functional.gelu(x, approximate="tanh")
def _silu(x):
    return torch.nn.functional.silu(x)
def _sigmoid(x):
    return torch.sigmoid(x)
def _layernorm(x, axis=-1, eps=1e-5):
    m = x.mean(dim=axis, keepdim=True)
    v = x.var(dim=axis, keepdim=True, unbiased=False)
    return (x - m) / torch.sqrt(v + eps)
def _scatter_add(tgt, idx, src, axis=0):
    return tgt.clone().index_add_(axis, idx, src)
def _segment_sum(src, seg, n):
    out = torch.zeros((n,) + src.shape[1:], dtype=src.dtype)
    return out.index_add_(0, seg, src)
def _pad(x, pw):
    flat = tuple(v for pair in reversed(pw) for v in pair)
    return torch.nn.functional.pad(x, flat)

kernel_name = 'concat_heads__gqa_block_cached__gqa_block_cached__near_ridge'

def setup_inputs():

    _w = (lambda a: (lambda t: t.to(torch.bfloat16) if t.is_floating_point() else t)(torch.as_tensor(a)))
    def _A_setup():
        B, Sq, D = 16, 32, 1024
        Hq, Hkv, Sk, Dh = 32, 4, 1024, 128
        assert Hq % Hkv == 0, (Hq, Hkv)
        return {
            "x": _w((lambda *s: torch.randn(*s, dtype=torch.bfloat16) * 0.8)(B, Sq, D)),
            "k_cache": _w((lambda *s: torch.randn(*s, dtype=torch.bfloat16) * 0.8)(B, Hkv, Sk, Dh)),
            "v_cache": _w((lambda *s: torch.randn(*s, dtype=torch.bfloat16) * 0.05)(B, Hkv, Sk, Dh)),
            "wq": _w((lambda *s: torch.randn(*s, dtype=torch.bfloat16) * 0.8)(D, Hq * Dh) * (D ** -0.5)),
            "wo": _w((lambda *s: torch.randn(*s, dtype=torch.bfloat16) * 0.05)(Hq * Dh, D) * ((Hq * Dh) ** -0.5)),
        }
    _A_in = _A_setup()

    def _B_setup():
        B, Sq, D = 16, 32, 1024
        Hq, Hkv, Sk, Dh = 32, 4, 1024, 128
        assert Hq % Hkv == 0, (Hq, Hkv)
        return {
            "x": _w((lambda *s: torch.randn(*s, dtype=torch.bfloat16) * 0.8)(B, Sq, D)),
            "k_cache": _w((lambda *s: torch.randn(*s, dtype=torch.bfloat16) * 0.8)(B, Hkv, Sk, Dh)),
            "v_cache": _w((lambda *s: torch.randn(*s, dtype=torch.bfloat16) * 0.05)(B, Hkv, Sk, Dh)),
            "wq": _w((lambda *s: torch.randn(*s, dtype=torch.bfloat16) * 0.8)(D, Hq * Dh) * (D ** -0.5)),
            "wo": _w((lambda *s: torch.randn(*s, dtype=torch.bfloat16) * 0.05)(Hq * Dh, D) * ((Hq * Dh) ** -0.5)),
        }
    _B_in = _B_setup()

    return {
        "A_x": _A_in["x"],
        "A_k_cache": _A_in["k_cache"],
        "A_v_cache": _A_in["v_cache"],
        "A_wq": _A_in["wq"],
        "A_wo": _A_in["wo"],
        "B_x": _B_in["x"],
        "B_k_cache": _B_in["k_cache"],
        "B_v_cache": _B_in["v_cache"],
        "B_wq": _B_in["wq"],
        "B_wo": _B_in["wo"],
    }

def reference(A_x, A_k_cache, A_v_cache, A_wq, A_wo, B_x, B_k_cache, B_v_cache, B_wq, B_wo):
    def _A_ref(x, k_cache, v_cache, wq, wo):
        B, Sq, D = x.shape
        Hq, Dh = 32, 128
        Hkv = k_cache.shape[1]
        rep = Hq // Hkv
        q = (lambda x, *d: x.permute(*d))((x @ wq).reshape(B, Sq, Hq, Dh), 0, 2, 1, 3)
        k = (lambda x, n, axis: torch.repeat_interleave(x, n, dim=axis))(k_cache, rep, axis=1)
        v = (lambda x, n, axis: torch.repeat_interleave(x, n, dim=axis))(v_cache, rep, axis=1)
        scores = torch.einsum("bhqd,bhkd->bhqk", q, k) * (Dh ** -0.5)
        p = _softmax(scores, axis=-1)
        o = torch.einsum("bhqk,bhkd->bhqd", p, v)
        return (lambda x, *d: x.permute(*d))(o, 0, 2, 1, 3).reshape(B, Sq, Hq * Dh) @ wo

    def _B_ref(x, k_cache, v_cache, wq, wo):
        B, Sq, D = x.shape
        Hq, Dh = 32, 128
        Hkv = k_cache.shape[1]
        rep = Hq // Hkv
        q = (lambda x, *d: x.permute(*d))((x @ wq).reshape(B, Sq, Hq, Dh), 0, 2, 1, 3)
        k = (lambda x, n, axis: torch.repeat_interleave(x, n, dim=axis))(k_cache, rep, axis=1)
        v = (lambda x, n, axis: torch.repeat_interleave(x, n, dim=axis))(v_cache, rep, axis=1)
        scores = torch.einsum("bhqd,bhkd->bhqk", q, k) * (Dh ** -0.5)
        p = _softmax(scores, axis=-1)
        o = torch.einsum("bhqk,bhkd->bhqd", p, v)
        return (lambda x, *d: x.permute(*d))(o, 0, 2, 1, 3).reshape(B, Sq, Hq * Dh) @ wo

    a = _A_ref(A_x, A_k_cache, A_v_cache, A_wq, A_wo)
    b = _B_ref(B_x, B_k_cache, B_v_cache, B_wq, B_wo)
    return torch.concatenate([a, b], axis=-1)
```

```python
import re

def v(i, n=1):
    return f"v{i}" if n == 1 else f"v[{i}:{i+n-1}]"
def a(i, n=1):
    return f"a{i}" if n == 1 else f"a[{i}:{i+n-1}]"
def s(i, n=1):
    return f"s{i}" if n == 1 else f"s[{i}:{i+n-1}]"

_REG = re.compile(r'^(-|abs\()?([vas])(\d+)\)?$')
_RNG = re.compile(r'^(-|abs\()?([vas])\[(\d+):(\d+)\]\)?$')

def regs_of(tok):
    tok = tok.strip()
    m = _REG.match(tok)
    if m:
        return {(m.group(2), int(m.group(3)))}
    m = _RNG.match(tok)
    if m:
        return {(m.group(2), i) for i in range(int(m.group(3)), int(m.group(4)) + 1)}
    if tok == 'vcc':
        return {('s', 'vcc')}
    if tok == 'exec':
        return {('s', 'exec')}
    if tok == 'm0':
        return {('s', 'm0')}
    return set()

TRANS = ('v_exp_f32', 'v_log_f32', 'v_rcp_f32', 'v_rsq_f32', 'v_sqrt_f32', 'v_sin_f32', 'v_cos_f32')

class Ins:
    __slots__ = ('text', 'op', 'ops', 'kind', 'dst', 'src', 'passes', 'srcC', 'srcAB', 'states', 'label', 'lds', 'wide_store_data')
    def __init__(self, text):
        self.text = text
        t = text.split(';')[0].strip()
        self.label = None
        self.kind = 'other'
        self.dst = set(); self.src = set(); self.srcC = set(); self.srcAB = set()
        self.passes = 0; self.states = 1; self.lds = False; self.wide_store_data = set()
        if not t:
            self.op = ''; self.states = 0; self.kind = 'none'; return
        if t.endswith(':'):
            self.label = t[:-1]; self.op = ''; self.states = 0; self.kind = 'label'; return
        if t.startswith('.'):
            self.op = t; self.states = 0; self.kind = 'dir'; return
        parts = t.split(None, 1)
        op = parts[0]
        for suf in ('_e32', '_e64'):
            if op.endswith(suf): op = op[:-4]
        self.op = op
        rest = parts[1] if len(parts) > 1 else ''
        toks = [x.strip() for x in rest.split(',')]
        mods = ''
        if toks:
            lp = toks[-1].split(None, 1)
            if lp:
                toks[-1] = lp[0]
                mods = lp[1] if len(lp) > 1 else ''
        self.ops = toks
        R = [regs_of(x) for x in toks]
        if op == 's_nop':
            self.kind = 'nop'; self.states = int(toks[0], 0) + 1
        elif op.startswith('v_mfma'):
            self.kind = 'mfma'
            self.dst = R[0]; self.srcAB = R[1] | R[2]; self.srcC = R[3]
            self.src = self.srcAB | self.srcC
            self.passes = 8 if '32x32x16' in op else 4
            assert '32x32x16_bf16' in op or '16x16x32_bf16' in op, op
        elif op.startswith('v_'):
            self.kind = 'valu'
            if op.startswith('v_cmp'):
                self.dst = R[0]; self.src = set().union(*R[1:])
            elif op in ('v_readfirstlane_b32', 'v_readlane_b32'):
                self.dst = R[0]; self.src = set().union(*R[1:])
            elif op.startswith('v_permlane') and 'swap' in op:
                self.dst = R[0] | R[1]; self.src = R[0] | R[1]
            elif op in ('v_add_co_u32', 'v_sub_co_u32', 'v_addc_co_u32', 'v_subb_co_u32'):
                self.dst = R[0] | R[1]; self.src = set().union(*R[2:])
            elif op in ('v_fmac_f32', 'v_pk_fmac_f16', 'v_writelane_b32'):
                self.dst = R[0]; self.src = set().union(*R)
            else:
                self.dst = R[0]; self.src = set().union(*R[1:]) if len(R) > 1 else set()
            if 'dpp' in op or 'row_' in mods or 'quad_perm' in mods:
                self.kind = 'valu'; self.op = op + '#dpp'
        elif op.startswith('ds_'):
            self.kind = 'ds'
            if 'read' in op or 'bpermute' in op or 'swizzle' in op or 'permute' in op:
                self.dst = R[0]; self.src = set().union(*R[1:])
            else:
                self.src = set().union(*R)
        elif op.startswith('buffer_') or op.startswith('global_'):
            self.kind = 'vmem'
            lds = (' lds' in (' ' + mods)) or ('_lds_' in op)
            self.lds = lds
            if op.startswith('buffer_wbl2') or op.startswith('buffer_inv'):
                pass
            elif 'load' in op and not lds:
                self.dst = R[0]; self.src = set().union(*R[1:])
            elif 'load' in op and lds:
                self.src = set().union(*R) | {('s', 'm0')}
            elif 'atomic' in op:
                self.src = set().union(*R)
                if 'sc0' in mods: self.dst = R[0]
            else:
                self.src = set().union(*R)
                if 'x4' in op or 'x3' in op:
                    self.wide_store_data = R[0] if op.startswith('buffer_') else R[1]
        elif op.startswith('s_'):
            self.kind = 'salu'
            if op.startswith('s_cmp') or op.startswith('s_cbranch') or op in ('s_branch', 's_barrier', 's_waitcnt', 's_endpgm', 's_setprio', 's_sleep'):
                self.src = set().union(*R) if R else set()
            else:
                self.dst = R[0]; self.src = set().union(*R[1:]) if len(R) > 1 else set()
                if 'saveexec' in op: self.dst = self.dst | {('s', 'exec')}
        else:
            raise ValueError('unknown instruction ' + text)

def isv(r): return r[0] in 'va'

def need(p, c):
    n = 0
    if p.kind == 'valu':
        vd = {r for r in p.dst if isv(r)}
        sd = {r for r in p.dst if not isv(r)}
        if c.kind == 'mfma' and vd & c.src: n = max(n, 2)
        if c.kind == 'valu':
            if p.op in TRANS and c.op not in TRANS and vd & c.src: n = max(n, 1)
            if p.op in TRANS and c.op in TRANS and vd & c.src: n = max(n, 1)
            if c.op in ('v_readfirstlane_b32', 'v_readlane_b32') and vd & c.src: n = max(n, 1)
            if c.op.startswith('v_permlane') and vd & c.src: n = max(n, 2)
            if c.op.endswith('#dpp') and vd & c.src: n = max(n, 2)
            if sd & c.src: n = max(n, 4 if c.op in ('v_readlane_b32', 'v_writelane_b32') else 2)
            if c.op == 'v_cndmask_b32' and ('s', 'vcc') in sd: n = max(n, 2)
        if c.kind == 'vmem' and sd & c.src: n = max(n, 5)
        if c.kind == 'salu' and sd & c.src: n = max(n, 1)
        if c.kind == 'salu' and c.op.startswith('s_cbranch_vcc') and ('s', 'vcc') in sd: n = max(n, 1)
        if ('s', 'exec') in sd and c.kind in ('mfma', 'valu'): n = max(n, 5)
    if p.kind == 'mfma':
        big = 12 if p.passes == 8 else 8
        ov = 10 if p.passes == 8 else 6
        war = 7 if p.passes == 8 else 3
        if c.kind == 'mfma':
            if p.dst & c.srcAB: n = max(n, big)
            if p.dst & c.srcC and not (p.dst == c.srcC and p.passes == c.passes): n = max(n, ov)
            if p.dst & c.dst and not (p.dst == c.srcC): n = max(n, ov)
        elif c.kind == 'valu':
            if p.dst & (c.src | c.dst): n = max(n, big)
            if p.srcC & c.dst: n = max(n, war)
        elif c.kind in ('ds', 'vmem'):
            if p.dst & (c.src | c.dst): n = max(n, big)
    if p.kind == 'salu':
        if ('s', 'm0') in p.dst and c.kind == 'vmem' and c.lds: n = max(n, 1)
    if p.kind == 'vmem' and p.wide_store_data:
        if c.kind in ('valu', 'mfma') and p.wide_store_data & c.dst: n = max(n, 2)
        elif p.wide_store_data & c.dst: n = max(n, 1)
    if p.kind == 'ds' and p.op in ('ds_write_b128', 'ds_write_b96'):
        pass
    return n

class Asm:
    def __init__(self):
        self.lines = []
    def __call__(self, text):
        for l in text.split('\n'):
            self.lines.append(l.strip())
    def label(self, name): self.lines.append(name + ':')
    def comment(self, t): self.lines.append('; ' + t)

    def finish(self, verbose=True):
        ins = [Ins(l) for l in self.lines]
        WINDOW = 14
        inserted = 0
        def build():
            labels = {x.label: i for i, x in enumerate(ins) if x.label}
            bf = {}
            for i, x in enumerate(ins):
                if x.kind == 'salu' and (x.op.startswith('s_cbranch') or x.op == 's_branch'):
                    t = x.ops[0]
                    if t in labels: bf.setdefault(labels[t], []).append(i)
            return bf
        changed = True
        while changed:
            changed = False
            branch_from = build()
            i = 0
            while i < len(ins):
                c = ins[i]
                if c.states == 0 or c.kind == 'nop':
                    i += 1; continue
                worst = 0
                stack = [(i - 1, 0, False)]
                seen = set()
                while stack:
                    j, dist, viabr = stack.pop()
                    while j >= 0 and dist < WINDOW:
                        if (j, dist) in seen: break
                        seen.add((j, dist))
                        p = ins[j]
                        if p.kind == 'label':
                            for b in branch_from.get(j, []):
                                stack.append((b, dist, True))
                            j -= 1; continue
                        if p.kind == 'salu' and p.op in ('s_branch', 's_endpgm') and not viabr:
                            break
                        viabr = False
                        if p.states:
                            n = need(p, c)
                            if n - dist > worst: worst = n - dist
                            dist += p.states
                        j -= 1
                if worst > 0:
                    k = worst
                    newl = []
                    while k > 0:
                        t = min(k, 16); newl.append(Ins(f's_nop {t-1}')); k -= t
                    ins[i:i] = newl
                    inserted += worst
                    changed = True
                    branch_from = build()
                    i += len(newl)
                i += 1
        if verbose: print(f'hazard fixer inserted {inserted} wait states')
        out = []
        for x in ins:
            if x.kind in ('label', 'dir', 'none'): out.append(x.text)
            else: out.append('    ' + x.text)
        return '\n'.join(out)
```

```python
import sys, math
sys.path.insert(0, 'gen')
from asmlib import *

NAME = 'concat_heads__gqa_block_cached__gqa_block_cached__near_ridge'
HDR = open('cdna_kernels/%s.s.ref' % NAME).read().split('; Override launch')[0]

QF_OFF = 0
OF_OFF = 8 << 20
MFMA = 'v_mfma_f32_32x32x16_bf16'
import struct
def f2u(x): return struct.unpack('<I', struct.pack('<f', x))[0]
CSCALE = math.log2(math.e) / math.sqrt(128.0)

NT_W = ' nt'
NT_KV = ' nt'
NT_X = ' nt'

def kd(name, vgpr, agpr_off=None, sgpr=96):
    acc = agpr_off if agpr_off is not None else ((vgpr + 3) // 4) * 4
    acc = min(acc, 256)
    return f'''.p2align 6
.amdhsa_kernel {name}
  .amdhsa_next_free_vgpr {vgpr}
  .amdhsa_next_free_sgpr {sgpr}
  .amdhsa_accum_offset {acc}
  .amdhsa_group_segment_fixed_size 0
  .amdhsa_kernarg_size 104
  .amdhsa_user_sgpr_count 2
  .amdhsa_user_sgpr_kernarg_segment_ptr 1
  .amdhsa_system_sgpr_workgroup_id_x 1
.end_amdhsa_kernel
'''

def start(A, name):
    A(f'.globl {name}')
    A('.p2align 8')
    A(f'.type {name},@function')
    A.label(name)

def srd(A, d, lo, hi, nbytes):
    A(f's_mov_b32 s{d}, s{lo}')
    A(f's_mov_b32 s{d+1}, s{hi}')
    A(f's_mov_b32 s{d+2}, {nbytes}')
    A(f's_mov_b32 s{d+3}, 0x20000')

def k1(A):
    name = 'qproj_kernel'
    start(A, name)
    A('s_cmp_ge_u32 s2, 256')
    A('s_cbranch_scc1 L_k1_end')
    A('s_load_dwordx2 s[20:21], s[0:1], 0')
    A('s_load_dwordx2 s[22:23], s[0:1], 40')
    A('s_load_dwordx2 s[24:25], s[0:1], 24')
    A('s_load_dwordx2 s[26:27], s[0:1], 64')
    A('s_load_dwordx2 s[28:29], s[0:1], 96')
    A('s_and_b32 s30, s2, 7')
    A('s_lshr_b32 s31, s2, 3')
    A('s_lshr_b32 s32, s30, 2')
    A('s_and_b32 s33, s30, 3')
    A('s_and_b32 s34, s31, 3')
    A('s_lshr_b32 s35, s31, 2')
    A('s_lshl_b32 s36, s33, 3')
    A('s_add_u32 s36, s36, s35')
    A('v_lshrrev_b32 v1, 6, v0')
    A('v_and_b32 v0, 63, v0')
    A('v_readfirstlane_b32 s37, v1')
    A('s_waitcnt lgkmcnt(0)')
    A('s_cmp_eq_u32 s32, 0')
    A('s_cselect_b32 s20, s20, s22'); A('s_cselect_b32 s21, s21, s23')
    A('s_cselect_b32 s24, s24, s26'); A('s_cselect_b32 s25, s25, s27')
    srd(A, 4, 20, 21, 512 * 2048)
    srd(A, 8, 24, 25, 1024 * 8192)
    srd(A, 12, 28, 29, 16 << 20)
    A('s_lshl_b32 s38, s34, 7')
    A('s_lshl_b32 s39, s37, 5')
    A('s_add_u32 s38, s38, s39')
    A('v_lshrrev_b32 v10, 3, v0')
    A('v_add_u32 v10, s38, v10')
    A('v_lshlrev_b32 v10, 11, v10')
    A('v_and_b32 v11, 7, v0')
    A('v_lshrrev_b32 v12, 4, v0')
    A('v_xor_b32 v11, v11, v12')
    for i in range(4):
        if i & 1: A('v_xor_b32 v13, 4, v11')
        else: A('v_mov_b32 v13, v11')
        A('v_lshl_add_u32 v13, v13, 4, v10')
        A(f'v_add_u32 v{2+i}, {i*8*2048}, v13')
    A('s_lshl_b32 s39, s37, 4')
    A('v_add_u32 v10, s39, v12')
    A('v_lshlrev_b32 v10, 13, v10')
    A('v_and_b32 v11, 15, v0')
    A('v_lshlrev_b32 v13, 2, v12')
    A('v_xor_b32 v11, v11, v13')
    A('v_lshl_add_u32 v10, v11, 4, v10')
    A('s_lshl_b32 s39, s36, 8')
    A('v_add_u32 v10, s39, v10')
    for i in range(4):
        A(f'v_add_u32 v{6+i}, {i*4*8192}, v10')
    A('s_and_b32 s40, s37, 1')
    A('s_lshr_b32 s41, s37, 1')
    A('v_and_b32 v10, 31, v0')
    A('v_lshrrev_b32 v11, 5, v0')
    A('v_bfe_u32 v12, v0, 1, 3')
    A('v_xor_b32 v12, v12, v11')
    A('s_lshl_b32 s39, s40, 6')
    A('v_add_u32 v10, s39, v10')
    A('v_lshlrev_b32 v10, 7, v10')
    for ks in range(4):
        A(f'v_xor_b32 v13, {2*ks}, v12')
        A(f'v_lshl_add_u32 v{14+ks}, v13, 4, v10')
    A('v_bfe_u32 v12, v0, 2, 2')
    A('v_lshl_add_u32 v10, v11, 3, v12')
    A('v_lshlrev_b32 v10, 8, v10')
    A('v_add_u32 v10, 16384, v10')
    A('v_bfe_u32 v13, v0, 4, 1')
    A('v_lshl_add_u32 v10, v13, 5, v10')
    A('v_and_b32 v13, 1, v0')
    A('v_lshl_add_u32 v10, v13, 4, v10')
    A('v_bfe_u32 v13, v0, 1, 1')
    A('v_lshl_add_u32 v10, v13, 3, v10')
    A('s_lshl_b32 s39, s41, 1')
    for mt in range(2):
        A(f's_add_u32 s42, s39, {mt}')
        A('v_xor_b32 v13, s42, v12')
        A(f'v_lshl_add_u32 v{18+mt}, v13, 6, v10')
    for i in range(64): A(f'v_mov_b32 v{64+i}, 0')
    A('s_lshl_b32 s43, s35, 1')
    A('s_lshl_b32 s39, s34, 2')
    A('s_add_u32 s43, s43, s39')
    A('s_lshl_b32 s44, s37, 12')
    A('s_mov_b32 s45, 0')
    def issue():
        A('s_add_u32 s46, s43, s45')
        A('s_and_b32 s46, s46, 15')
        A('s_lshl_b32 s47, s46, 7')
        A('s_lshl_b32 s48, s46, 19')
        A('s_cmp_ge_u32 s45, 16')
        A('s_cselect_b32 s47, 0x10000000, s47')
        A('s_cselect_b32 s48, 0x10000000, s48')
        A('s_and_b32 s46, s45, 3')
        A('s_lshl_b32 s46, s46, 15')
        A('s_add_u32 m0, s46, s44')
        for i in range(4):
            A(f'buffer_load_dwordx4 v{2+i}, s[4:7], s47 offen{NT_X} lds')
            A(f's_add_u32 m0, m0, {1024 if i < 3 else 16384-3072}')
        for i in range(4):
            A(f'buffer_load_dwordx4 v{6+i}, s[8:11], s48 offen{NT_W} lds')
            if i < 3: A('s_add_u32 m0, m0, 1024')
        A('s_add_u32 s45, s45, 1')
    for _ in range(3): issue()
    A('s_mov_b32 s49, 0')
    A.label('L_k1_loop')
    A('s_waitcnt vmcnt(16)')
    A('s_barrier')
    A('s_and_b32 s50, s49, 3')
    A('s_lshl_b32 s50, s50, 15')
    for ks in range(4): A(f'v_add_u32 v{20+ks}, s50, v{14+ks}')
    for mt in range(2): A(f'v_add_u32 v{24+mt}, s50, v{18+mt}')
    def reads(ks):
        p = ks & 1
        for mt in range(2):
            for t in range(2):
                A(f'ds_read_b64_tr_b16 {v(32+p*16+mt*4+t*2,2)}, v{24+mt} offset:{(16*ks+4*t)*256}')
        for nt in range(2):
            A(f'ds_read_b128 {v(40+p*16+nt*4,4)}, v{20+ks} offset:{nt*4096}')
    reads(0)
    issue()
    for ks in range(4):
        if ks < 3:
            reads(ks + 1)
            A('s_waitcnt lgkmcnt(6)')
        else:
            A('s_waitcnt lgkmcnt(0)')
        p = ks & 1
        for mt in range(2):
            for nt in range(2):
                c = 64 + (mt * 2 + nt) * 16
                A(f'{MFMA} {v(c,16)}, {v(32+p*16+mt*4,4)}, {v(40+p*16+nt*4,4)}, {v(c,16)}')
    A('s_add_u32 s49, s49, 1')
    A('s_cmp_lt_u32 s49, 16')
    A('s_cbranch_scc1 L_k1_loop')
    A(f's_mov_b32 s51, {f2u(CSCALE):#x}')
    A('s_lshl_b32 s52, s32, 4')
    A('s_lshl_b32 s39, s34, 2')
    A('s_add_u32 s52, s52, s39')
    A('s_lshl_b32 s39, s40, 1')
    A('s_add_u32 s52, s52, s39')
    A('s_lshl_b32 s52, s52, 5')
    A('s_add_u32 s52, s52, s36')
    A('s_lshl_b32 s52, s52, 13')
    A('s_lshl_b32 s39, s41, 12')
    A('s_add_u32 s52, s52, s39')
    A(f's_add_u32 s52, s52, {QF_OFF}')
    A(f's_add_u32 s53, s52, {32*8192}')
    A('v_lshlrev_b32 v10, 4, v0')
    for mt in range(2):
        for nt in range(2):
            c = 64 + (mt * 2 + nt) * 16
            for r in range(16): A(f'v_mul_f32 v{c+r}, s51, v{c+r}')
            for r in range(8): A(f'v_cvt_pk_bf16_f32 v{c+r}, v{c+2*r}, v{c+2*r+1}')
            for aa in range(2):
                A(f'buffer_store_dwordx4 {v(c+4*aa,4)}, v10, s[12:15], s{52+nt} offen offset:{(2*mt+aa)*1024}')
    A.label('L_k1_end')
    A('s_endpgm')
    return kd(name, 128)

def k2(A):
    name = 'attn_kernel'
    start(A, name)
    A('s_cmp_ge_u32 s2, 256')
    A('s_cbranch_scc1 L_k2_end')
    A('s_load_dwordx4 s[20:23], s[0:1], 8')
    A('s_load_dwordx4 s[24:27], s[0:1], 48')
    A('s_load_dwordx2 s[28:29], s[0:1], 96')
    A('s_and_b32 s30, s2, 7')
    A('s_lshr_b32 s31, s2, 3')
    A('s_lshr_b32 s32, s30, 2')
    A('s_and_b32 s33, s30, 3')
    A('s_lshr_b32 s34, s31, 1')
    A('s_and_b32 s35, s31, 1')
    A('v_lshrrev_b32 v1, 6, v0')
    A('v_and_b32 v0, 63, v0')
    A('v_readfirstlane_b32 s37, v1')
    A('s_waitcnt lgkmcnt(0)')
    A('s_cmp_eq_u32 s32, 0')
    for i in range(4): A(f's_cselect_b32 s{20+i}, s{20+i}, s{24+i}')
    A('s_lshl_b32 s38, s34, 2')
    A('s_add_u32 s38, s38, s33')
    A('s_lshl_b32 s38, s38, 18')
    A('s_add_u32 s20, s20, s38'); A('s_addc_u32 s21, s21, 0')
    A('s_add_u32 s22, s22, s38'); A('s_addc_u32 s23, s23, 0')
    srd(A, 4, 20, 21, 262144)
    srd(A, 8, 22, 23, 262144)
    srd(A, 12, 28, 29, 16 << 20)
    A('s_lshl_b32 s36, s33, 3')
    A('s_lshl_b32 s39, s35, 2')
    A('s_add_u32 s36, s36, s39')
    A('s_add_u32 s36, s36, s37')
    A('s_lshl_b32 s52, s32, 4')
    A('s_add_u32 s52, s52, s34')
    A('s_lshl_b32 s52, s52, 5')
    A('s_add_u32 s52, s52, s36')
    A('s_lshl_b32 s52, s52, 13')
    A('v_lshlrev_b32 v1, 4, v0')
    A('s_add_u32 s53, s52, 4096')
    for kk in range(8):
        A(f'buffer_load_dwordx4 {v(32+4*kk,4)}, v1, s[12:15], s{52+kk//4} offen offset:{(kk%4)*1024}')
    A('v_lshrrev_b32 v12, 4, v0')
    A('s_lshl_b32 s39, s37, 4')
    A('v_add_u32 v10, s39, v12')
    A('v_lshlrev_b32 v10, 8, v10')
    A('v_and_b32 v11, 15, v0')
    A('v_xor_b32 v13, v11, v12')
    for i in range(4):
        A(f'v_xor_b32 v14, {4*i}, v13')
        A(f'v_lshl_add_u32 v{2+i}, v14, 4, v10')
    A('v_lshlrev_b32 v13, 2, v12')
    A('v_xor_b32 v13, v11, v13')
    A('v_lshl_add_u32 v6, v13, 4, v10')
    A('v_and_b32 v10, 31, v0')
    A('v_lshrrev_b32 v11, 5, v0')
    A('v_and_b32 v12, 15, v0')
    A('v_xor_b32 v12, v12, v11')
    A('v_lshlrev_b32 v10, 8, v10')
    for kk in range(8):
        A(f'v_xor_b32 v13, {2*kk}, v12')
        A(f'v_lshl_add_u32 v{16+kk}, v13, 4, v10')
    A('v_bfe_u32 v12, v0, 2, 2')
    A('v_lshl_add_u32 v10, v11, 2, v12')
    A('v_lshlrev_b32 v10, 8, v10')
    A('v_add_u32 v10, 0x10000, v10')
    A('v_bfe_u32 v13, v0, 4, 1')
    A('v_lshl_add_u32 v10, v13, 5, v10')
    A('v_and_b32 v13, 3, v0')
    A('v_lshl_add_u32 v10, v13, 3, v10')
    for dt in range(4):
        A(f'v_xor_b32 v13, {dt}, v12')
        A(f'v_lshl_add_u32 v{24+dt}, v13, 6, v10')
    for i in range(64): A(f'v_mov_b32 v{64+i}, 0')
    A('v_mov_b32 v28, 0xff800000')
    A('v_mov_b32 v29, 0')
    A('s_lshl_b32 s44, s37, 12')
    A('s_mov_b32 s45, 0')
    def issue():
        A('s_lshl_b32 s47, s45, 14')
        A('s_and_b32 s46, s45, 3')
        A('s_lshl_b32 s46, s46, 14')
        A('s_add_u32 m0, s46, s44')
        for i in range(4):
            A(f'buffer_load_dwordx4 v{2+i}, s[4:7], s47 offen offset:{i*1024}{NT_KV} lds')
        A('s_add_u32 m0, m0, 0x10000')
        for i in range(4):
            A(f'buffer_load_dwordx4 v6, s[8:11], s47 offen offset:{i*1024}{NT_KV} lds')
        A('s_add_u32 s45, s45, 1')
    for _ in range(3): issue()
    A('s_mov_b32 s49, 0')
    A.label('L_k2_loop')
    A('s_waitcnt vmcnt(16)')
    A('s_barrier')
    issue()
    A('s_and_b32 s50, s49, 3')
    A('s_lshl_b32 s50, s50, 14')
    for kk in range(8): A(f'v_add_u32 v{240+kk}, s50, v{16+kk}')
    for dt in range(4): A(f'v_add_u32 v{248+dt}, s50, v{24+dt}')
    for t in range(2):
        for kk in range(8):
            A(f'ds_read_b128 {v(176+t*32+kk*4,4)}, v{240+kk} offset:{t*8192}')
    for t in range(2):
        A(f's_waitcnt lgkmcnt({8 if t == 0 else 0})')
        for kk in range(8):
            c = 128 + t * 16
            A(f'{MFMA} {v(c,16)}, {v(176+t*32+kk*4,4)}, {v(32+kk*4,4)}, {v(c,16) if kk else 0}')
    def vreads(t):
        for ks in range(2):
            for dt in range(4):
                for u in range(2):
                    A(f'ds_read_b64_tr_b16 {v(176+t*32+(ks*4+dt)*4+u*2,2)}, v{248+dt} offset:{(32*t+16*ks+8*u)*256}')
    A('s_nop 7')
    vreads(0)
    A('v_max3_f32 v30, v128, v129, v130')
    for i in range(3, 31, 2): A(f'v_max3_f32 v30, v30, v{128+i}, v{128+i+1}')
    A('v_max_f32 v30, v30, v159')
    A('v_mov_b32 v31, v30')
    A('v_permlane32_swap_b32 v30, v31')
    A('v_max3_f32 v30, v30, v31, v28')
    A('v_sub_f32 v31, v28, v30')
    A('v_exp_f32 v31, v31')
    A('v_mov_b32 v28, v30')
    for i in range(32): A(f'v_sub_f32 v{128+i}, v{128+i}, v30')
    for i in range(32): A(f'v_exp_f32 v{128+i}, v{128+i}')
    A('v_mul_f32 v29, v29, v31')
    for i in range(32): A(f'v_add_f32 v29, v29, v{128+i}')
    for i in range(16): A(f'v_cvt_pk_bf16_f32 v{160+i}, v{128+2*i}, v{128+2*i+1}')
    for i in range(64): A(f'v_mul_f32 v{64+i}, v{64+i}, v31')
    A('s_waitcnt lgkmcnt(0)')
    vreads(1)
    for t in range(2):
        if t == 1: A('s_waitcnt lgkmcnt(0)')
        for ks in range(2):
            for dt in range(4):
                c = 64 + dt * 16
                A(f'{MFMA} {v(c,16)}, {v(176+t*32+(ks*4+dt)*4,4)}, {v(160+t*8+ks*4,4)}, {v(c,16)}')
    A('s_add_u32 s49, s49, 1')
    A('s_cmp_lt_u32 s49, 16')
    A('s_cbranch_scc1 L_k2_loop')
    A('v_mov_b32 v31, v29')
    A('v_permlane32_swap_b32 v29, v31')
    A('v_add_f32 v29, v29, v31')
    A('v_rcp_f32 v29, v29')
    A(f's_add_u32 s52, s52, {OF_OFF}')
    A(f's_add_u32 s53, s53, {OF_OFF}')
    for dt in range(4):
        c = 64 + dt * 16
        for r in range(16): A(f'v_mul_f32 v{c+r}, v{c+r}, v29')
        for r in range(8): A(f'v_cvt_pk_bf16_f32 v{c+r}, v{c+2*r}, v{c+2*r+1}')
        for aa in range(2):
            kk = dt * 2 + aa
            A(f'buffer_store_dwordx4 {v(c+4*aa,4)}, v1, s[12:15], s{52+kk//4} offen offset:{(kk%4)*1024}')
    A.label('L_k2_end')
    A('s_endpgm')
    return kd(name, 256)

def k3(A):
    name = 'oproj_kernel'
    start(A, name)
    A('s_cmp_ge_u32 s2, 256')
    A('s_cbranch_scc1 L_k3_end')
    A('s_load_dwordx2 s[20:21], s[0:1], 32')
    A('s_load_dwordx2 s[22:23], s[0:1], 72')
    A('s_load_dwordx2 s[24:25], s[0:1], 80')
    A('s_load_dwordx2 s[28:29], s[0:1], 96')
    A('s_and_b32 s30, s2, 7')
    A('s_lshr_b32 s31, s2, 3')
    A('s_lshr_b32 s32, s30, 2')
    A('s_and_b32 s33, s30, 3')
    A('s_and_b32 s34, s31, 7')
    A('s_lshr_b32 s35, s31, 3')
    A('v_lshrrev_b32 v1, 6, v0')
    A('v_and_b32 v0, 63, v0')
    A('v_readfirstlane_b32 s37, v1')
    A('s_waitcnt lgkmcnt(0)')
    A('s_cmp_eq_u32 s32, 0')
    A('s_cselect_b32 s20, s20, s22'); A('s_cselect_b32 s21, s21, s23')
    srd(A, 4, 20, 21, 4096 * 2048)
    srd(A, 8, 24, 25, 512 * 4096)
    srd(A, 12, 28, 29, 16 << 20)
    A('s_lshl_b32 s36, s33, 2')
    A('s_add_u32 s36, s36, s35')
    A('s_lshl_b32 s36, s36, 7')
    A('v_lshrrev_b32 v10, 3, v0')
    A('s_lshl_b32 s39, s37, 10')
    A('v_add_u32 v10, s39, v10')
    A('v_lshlrev_b32 v10, 11, v10')
    A('v_add_u32 v10, s36, v10')
    A('v_bfe_u32 v11, v0, 4, 1')
    A('v_lshlrev_b32 v11, 2, v11')
    A('v_and_b32 v12, 7, v0')
    A('v_xor_b32 v11, v11, v12')
    A('v_lshl_add_u32 v10, v11, 4, v10')
    for i in range(8): A(f'v_add_u32 v{2+i}, {i*16384}, v10')
    A('s_lshl_b32 s52, s32, 4')
    A('s_lshl_b32 s39, s34, 1')
    A('s_add_u32 s52, s52, s39')
    A('s_lshl_b32 s52, s52, 5')
    A('s_lshl_b32 s39, s37, 3')
    A('s_add_u32 s52, s52, s39')
    A('s_lshl_b32 s52, s52, 13')
    A(f's_add_u32 s52, s52, {OF_OFF}')
    A('v_lshlrev_b32 v1, 4, v0')
    A('v_add_u32 v10, s52, v1')
    A(f'v_add_u32 v11, {32*8192}, v10')
    A('v_lshrrev_b32 v16, 5, v0')
    A('v_bfe_u32 v17, v0, 2, 2')
    A('v_lshl_add_u32 v16, v16, 2, v17')
    A('v_lshlrev_b32 v16, 7, v16')
    A('s_mul_i32 s44, s37, 24576')
    A('v_add_u32 v16, s44, v16')
    A('v_and_b32 v18, 1, v0')
    A('v_lshl_add_u32 v16, v18, 5, v16')
    A('v_bfe_u32 v18, v0, 4, 1')
    A('v_lshl_add_u32 v16, v18, 4, v16')
    A('v_bfe_u32 v18, v0, 1, 1')
    A('v_lshl_add_u32 v16, v18, 3, v16')
    A('v_bfe_u32 v17, v0, 3, 1')
    for mt in range(2):
        A(f'v_xor_b32 v18, {mt}, v17')
        A(f'v_lshl_add_u32 v{14+mt}, v18, 6, v16')
    for i in range(64): A(f'v_mov_b32 v{64+i}, 0')
    A('s_lshl_b32 s43, s34, 1')
    A('s_lshl_b32 s39, s35, 2')
    A('s_add_u32 s43, s43, s39')
    A('s_mov_b32 s45, 0')
    def issue(sl):
        A('s_add_u32 s46, s43, s45')
        A('s_and_b32 s46, s46, 15')
        A('s_lshl_b32 s47, s46, 17')
        A('s_lshl_b32 s48, s46, 12')
        A('s_cmp_ge_u32 s45, 16')
        A('s_cselect_b32 s47, 0x10000000, s47')
        A('s_cselect_b32 s48, 0x10000000, s48')
        A(f's_add_u32 m0, s44, {sl*8192}')
        for i in range(8):
            A(f'buffer_load_dwordx4 v{2+i}, s[4:7], s47 offen{NT_W} lds')
            if i < 7: A('s_add_u32 m0, m0, 1024')
        for nt in range(2):
            for ks in range(4):
                A(f'buffer_load_dwordx4 {v(128+sl*32+(nt*4+ks)*4,4)}, v{10+nt}, s[12:15], s48 offen offset:{ks*1024}')
        A('s_add_u32 s45, s45, 1')
    def compute(sl, vm=32):
        A(f's_waitcnt vmcnt({vm})')
        for ks in range(4):
            for mt in range(2):
                for u in range(2):
                    A(f'ds_read_b64_tr_b16 {v(32+(ks*2+mt)*4+u*2,2)}, v{14+mt} offset:{sl*8192+(16*ks+8*u)*128}')
        for ks in range(4):
            A(f's_waitcnt lgkmcnt({12-4*ks})')
            for mt in range(2):
                for nt in range(2):
                    c = 64 + (mt * 2 + nt) * 16
                    A(f'{MFMA} {v(c,16)}, {v(32+(ks*2+mt)*4,4)}, {v(128+sl*32+(nt*4+ks)*4,4)}, {v(c,16)}')
    issue(0); issue(1)
    A('s_mov_b32 s49, 0')
    A.label('L_k3_loop')
    for sl in range(3):
        issue((sl + 2) % 3)
        compute(sl)
    A('s_add_u32 s49, s49, 3')
    A('s_cmp_lt_u32 s49, 15')
    A('s_cbranch_scc1 L_k3_loop')
    compute(0, 16)
    A('s_waitcnt vmcnt(0)')
    A('s_barrier')
    A('s_lshl_b32 s39, s37, 14')
    A('v_add_u32 v20, s39, v1')
    for t in range(4):
        for q in range(4):
            A(f'ds_write_b128 v20, {v(64+t*16+q*4,4)} offset:{(t*4+q)*1024}')
    A('s_waitcnt lgkmcnt(0)')
    A('s_barrier')
    A('s_lshl_b32 s39, s37, 12')
    A('v_add_u32 v20, s39, v1')
    for sw in range(4):
        for q in range(4):
            A(f'ds_read_b128 {v(128+sw*16+q*4,4)}, v20 offset:{sw*16384+q*1024}')
    A('s_waitcnt lgkmcnt(0)')
    for r in range(16):
        A(f'v_add_f32 v{128+r}, v{128+r}, v{144+r}')
        A(f'v_add_f32 v{160+r}, v{160+r}, v{176+r}')
    for r in range(16): A(f'v_add_f32 v{128+r}, v{128+r}, v{160+r}')
    for r in range(8): A(f'v_cvt_pk_bf16_f32 v{128+r}, v{128+2*r}, v{128+2*r+1}')
    A('s_and_b32 s39, s37, 1')
    A('s_lshl_b32 s39, s39, 5')
    A('s_lshl_b32 s40, s34, 6')
    A('s_add_u32 s39, s39, s40')
    A('v_and_b32 v20, 31, v0')
    A('v_add_u32 v20, s39, v20')
    A('v_lshlrev_b32 v20, 12, v20')
    A('v_lshrrev_b32 v21, 5, v0')
    A('v_lshl_add_u32 v20, v21, 5, v20')
    A('s_lshl_b32 s39, s32, 11')
    A('s_add_u32 s39, s39, s36')
    A('s_lshr_b32 s40, s37, 1')
    A('s_lshl_b32 s40, s40, 6')
    A('s_add_u32 s39, s39, s40')
    A('buffer_store_dwordx4 v[128:131], v20, s[8:11], s39 offen')
    A('buffer_store_dwordx4 v[132:135], v20, s[8:11], s39 offen offset:16')
    A.label('L_k3_end')
    A('s_endpgm')
    return kd(name, 256)

def main(out):
    A = Asm()
    kds = [k1(A), k2(A), k3(A)]
    body = A.finish()
    txt = HDR
    txt += '; @launch kernel=qproj_kernel grid=(256,1,1) block=(256,1,1) lds=131072\n'
    txt += '; @launch kernel=attn_kernel grid=(256,1,1) block=(256,1,1) lds=131072\n'
    txt += '; @launch kernel=oproj_kernel grid=(256,1,1) block=(256,1,1) lds=98304\n'
    txt += '.amdgcn_target "amdgcn-amd-amdhsa--gfx950"\n.text\n' + body + '\n.section .rodata,"a"\n' + ''.join(kds)
    open(out, 'w').write(txt)

if __name__ == '__main__':
    main(sys.argv[1] if len(sys.argv) > 1 else f'cdna_kernels/{NAME}.s')
```

```python
import sys, math, struct
sys.path.insert(0, 'gen')
from asmlib import *

NAME = 'concat_heads__gqa_block_cached__gqa_block_cached__near_ridge'
HDR = open('cdna_kernels/%s.s.ref' % NAME).read().split('; Override launch')[0]
QF_OFF = 0
OF_OFF = 8 << 20
PT_OFF = 16 << 20
FL_OFF = 32 << 20
WS_BYTES = 48 << 20
ST_OFF = 40 << 20
MFMA = 'v_mfma_f32_32x32x16_bf16'
def f2u(x): return struct.unpack('<I', struct.pack('<f', x))[0]
CSCALE = math.log2(math.e) / math.sqrt(128.0)
OOB = 0x10000000
BW = 65536

class Cfg:
    nt_w = ''; nt_x = ''; nt_kv = ' nt'; nt_wo = ''
    prio_loader = 0
    prio_compute = 0
    stamps = 0
    ahead = 3
C = Cfg()

def kd(name, vgpr, sgpr=100):
    acc = min(((vgpr + 3) // 4) * 4, 256)
    return f'''.p2align 6
.amdhsa_kernel {name}
  .amdhsa_next_free_vgpr {vgpr}
  .amdhsa_next_free_sgpr {sgpr}
  .amdhsa_accum_offset {acc}
  .amdhsa_group_segment_fixed_size 0
  .amdhsa_kernarg_size 104
  .amdhsa_user_sgpr_count 2
  .amdhsa_user_sgpr_kernarg_segment_ptr 1
  .amdhsa_system_sgpr_workgroup_id_x 1
.end_amdhsa_kernel
'''
def srd(A, d, lo, hi, nbytes):
    A(f's_mov_b32 s{d}, s{lo}'); A(f's_mov_b32 s{d+1}, s{hi}')
    A(f's_mov_b32 s{d+2}, {nbytes}'); A(f's_mov_b32 s{d+3}, 0x20000')

def common(A, name, pfx):
    A(f'.globl {name}'); A('.p2align 8'); A(f'.type {name},@function'); A.label(name)
    A('s_cmp_ge_u32 s2, 256')
    A(f's_cbranch_scc1 {pfx}_end')
    A('s_load_dwordx8 s[60:67], s[0:1], 0')
    A('s_load_dwordx2 s[68:69], s[0:1], 32')
    A('s_load_dwordx2 s[40:41], s[0:1], 40')
    A('s_load_dwordx8 s[44:51], s[0:1], 48')
    A('s_load_dwordx2 s[70:71], s[0:1], 80')
    A('s_load_dwordx4 s[72:75], s[0:1], 88')
    A('s_and_b32 s30, s2, 7')
    A('s_lshr_b32 s31, s2, 3')
    A('s_lshr_b32 s32, s30, 2')
    A('s_and_b32 s33, s30, 3')
    A('v_lshrrev_b32 v1, 6, v0')
    A('v_and_b32 v0, 63, v0')
    A('v_readfirstlane_b32 s37, v1')
    A('s_lshr_b32 s36, s37, 2')
    A('s_and_b32 s37, s37, 3')
    A('s_waitcnt lgkmcnt(0)')
    A('s_cmp_eq_u32 s32, 0')
    A('s_cselect_b64 s[60:61], s[60:61], s[40:41]')
    for i in range(4): A(f's_cselect_b64 s[{62+2*i}:{63+2*i}], s[{62+2*i}:{63+2*i}], s[{44+2*i}:{45+2*i}]')
    srd(A, 12, 74, 75, WS_BYTES)
    stamp(A, 0); stamp(A, 1, True)

def stamp(A, k, cyc=False):
    if not C.stamps: return
    A(f's_mem{"" if cyc else "real"}time s[{76+2*k}:{77+2*k}]')
    A('s_waitcnt lgkmcnt(0)')
def stamp_flush(A, kern, n):
    if not C.stamps: return
    A(f's_add_u32 s39, s2, {kern*256}')
    A('s_lshl_b32 s39, s39, 3')
    A('s_lshl_b32 s42, s36, 2')
    A('s_add_u32 s39, s39, s42')
    A('s_add_u32 s39, s39, s37')
    A('s_lshl_b32 s39, s39, 6')
    A(f's_add_u32 s39, s39, {ST_OFF}')
    A('v_mov_b32 v10, 0')
    for k in range(n):
        A(f'v_mov_b32 v11, s{76+2*k}')
        A(f'buffer_store_dword v11, v10, s[12:15], s39 offen offset:{4*k}')
def loader_issue(A, nt_a, nt_b, a_offs, b_offs):
    A('s_mov_b32 m0, s46')
    for i in range(4):
        reg, trick = a_offs[i]
        if trick: A(f'buffer_load_dwordx4 v{reg}, s[4:7], s47 offen offset:{i*1024}{nt_a} lds')
        else:
            if i: A('s_add_u32 m0, m0, 1024')
            A(f'buffer_load_dwordx4 v{reg}, s[4:7], s47 offen{nt_a} lds')
    A(f's_add_u32 m0, s46, {BW}')
    for i in range(4):
        reg, trick = b_offs[i]
        if trick: A(f'buffer_load_dwordx4 v{reg}, s[8:11], s48 offen offset:{i*1024}{nt_b} lds')
        else:
            if i: A('s_add_u32 m0, m0, 1024')
            A(f'buffer_load_dwordx4 v{reg}, s[8:11], s48 offen{nt_b} lds')

def rowswz_voff(A, pitch_shift, colbase_sgpr):
    A('v_lshrrev_b32 v12, 4, v0')
    A('s_lshl_b32 s39, s37, 4')
    A('v_add_u32 v10, s39, v12')
    A(f'v_lshlrev_b32 v10, {pitch_shift}, v10')
    A('v_and_b32 v11, 15, v0')
    A('v_lshlrev_b32 v13, 2, v12')
    A('v_xor_b32 v11, v11, v13')
    A('v_lshl_add_u32 v10, v11, 4, v10')
    A(f'v_add_u32 v2, s{colbase_sgpr}, v10')
    for i in range(1, 4): A(f'v_add_u32 v{2+i}, {(i*4) << pitch_shift}, v2')

def gemm_loader_loop(A, pfx, a_shift, b_shift, nt_a, nt_b, a_offs, b_offs):
    ahead = C.ahead
    A('s_lshl_b32 s44, s37, 12')
    A('s_mov_b32 s45, 0')
    def prep():
        A('s_add_u32 s46, s43, s45')
        A('s_and_b32 s46, s46, 15')
        A(f's_lshl_b32 s47, s46, {a_shift}')
        A(f's_lshl_b32 s48, s46, {b_shift}')
        A('s_and_b32 s46, s45, 3')
        A('s_lshl_b32 s46, s46, 14')
        A('s_add_u32 s46, s46, s44')
    A.label(f'{pfx}_lloop')
    A(f's_cmp_lt_u32 s45, {ahead}')
    A(f's_cbranch_scc1 {pfx}_lskip')
    A(f's_waitcnt vmcnt({8*(ahead-1)})')
    A('s_barrier')
    A.label(f'{pfx}_lskip')
    prep()
    loader_issue(A, nt_a, nt_b, a_offs, b_offs)
    A('s_add_u32 s45, s45, 1')
    A('s_cmp_lt_u32 s45, 16')
    A(f's_cbranch_scc1 {pfx}_lloop')
    for k in range(ahead):
        A(f's_waitcnt vmcnt({8*(ahead-1-k)})')
        A('s_barrier')

def gemm_compute(A, pfx, breg):
    def reads(slot, ks):
        p = ks & 1
        for mt in range(2):
            for t in range(2):
                A(f'ds_read_b64_tr_b16 {v(32+p*16+mt*4+t*2,2)}, v{18+mt} offset:{slot*16384+(16*ks+C.tstep*t)*256}')
        for nt in range(2):
            r, imm = breg(ks, nt)
            A(f'ds_read_b128 {v(40+p*16+nt*4,4)}, v{r} offset:{slot*16384+imm}')
    for i in range(64): A(f'v_mov_b32 v{64+i}, 0')
    A('s_mov_b32 s49, 0')
    stamp(A, 2)
    A('s_barrier')
    stamp(A, 3)
    reads(0, 0)
    A.label(f'{pfx}_cloop')
    for slot in range(4):
        for ks in range(4):
            if ks < 3:
                reads(slot, ks + 1)
                A('s_waitcnt lgkmcnt(6)')
            else:
                A('s_waitcnt lgkmcnt(0)')
                if slot == 3:
                    A('s_add_u32 s49, s49, 1')
                    A('s_cmp_eq_u32 s49, 4')
                    A(f's_cbranch_scc1 {pfx}_clast')
                A('s_barrier')
                reads((slot + 1) & 3, 0)
            p = ks & 1
            for mt in range(2):
                for nt in range(2):
                    c = 64 + (mt * 2 + nt) * 16
                    A(f'{MFMA} {v(c,16)}, {v(32+p*16+mt*4,4)}, {v(40+p*16+nt*4,4)}, {v(c,16)}')
    A(f's_branch {pfx}_cloop')
    A.label(f'{pfx}_clast')
    for mt in range(2):
        for nt in range(2):
            c = 64 + (mt * 2 + nt) * 16
            A(f'{MFMA} {v(c,16)}, {v(48+mt*4,4)}, {v(56+nt*4,4)}, {v(c,16)}')
    stamp(A, 4)

def k1(A):
    name = 'qproj_kernel'; pfx = 'L1'
    common(A, name, pfx)
    A('s_and_b32 s34, s31, 3')
    A('s_lshr_b32 s35, s31, 2')
    A('s_lshl_b32 s38, s33, 3')
    A('s_add_u32 s38, s38, s35')
    A('s_cmp_eq_u32 s36, 0')
    A(f's_cbranch_scc1 {pfx}_comp')
    if C.prio_loader: A(f's_setprio {C.prio_loader}')
    srd(A, 4, 66, 67, 1024 * 8192)
    srd(A, 8, 60, 61, 512 * 2048)
    A('s_lshl_b32 s42, s38, 8')
    rowswz_voff(A, 13, 42)
    A('s_lshl_b32 s42, s34, 7')
    A('s_lshl_b32 s39, s37, 5')
    A('s_add_u32 s42, s42, s39')
    A('v_lshrrev_b32 v10, 3, v0')
    A('v_add_u32 v10, s42, v10')
    A('v_lshlrev_b32 v10, 11, v10')
    A('v_and_b32 v11, 7, v0')
    A('v_xor_b32 v11, v11, v12')
    A('v_lshl_add_u32 v6, v11, 4, v10')
    A('v_xor_b32 v11, 4, v11')
    A('v_lshl_add_u32 v7, v11, 4, v10')
    A(f'v_add_u32 v7, {8*2048}, v7')
    A(f'v_add_u32 v8, {16*2048}, v6')
    A(f'v_add_u32 v9, {16*2048}, v7')
    A('s_lshl_b32 s43, s35, 1')
    A('s_lshl_b32 s39, s34, 2')
    A('s_add_u32 s43, s43, s39')
    gemm_loader_loop(A, pfx, 19, 7, C.nt_w, C.nt_x, [(2+i, False) for i in range(4)], [(6+i, False) for i in range(4)])
    A('s_lshl_b32 s39, s2, 7')
    A(f's_add_u32 s39, s39, {FL_OFF}')
    A('v_and_b32 v10, 31, v0')
    A('v_lshlrev_b32 v10, 2, v10')
    A('v_mov_b32 v11, 0')
    A('buffer_store_dword v11, v10, s[12:15], s39 offen')
    A('s_endpgm')
    A.label(f'{pfx}_comp')
    if C.prio_compute: A(f's_setprio {C.prio_compute}')
    A('s_and_b32 s40, s37, 1')
    A('s_lshr_b32 s41, s37, 1')
    A('v_and_b32 v10, 31, v0')
    A('v_lshrrev_b32 v11, 5, v0')
    A('v_bfe_u32 v12, v0, 1, 3')
    A('v_xor_b32 v12, v12, v11')
    A('s_lshl_b32 s39, s40, 6')
    A('v_add_u32 v10, s39, v10')
    A('v_lshlrev_b32 v10, 7, v10')
    A(f'v_add_u32 v10, {BW}, v10')
    for ks in range(4):
        A(f'v_xor_b32 v13, {2*ks}, v12')
        A(f'v_lshl_add_u32 v{14+ks}, v13, 4, v10')
    A('v_bfe_u32 v12, v0, 2, 2')
    A('v_lshl_add_u32 v10, v11, 3, v12')
    A('v_lshlrev_b32 v10, 8, v10')
    A('v_bfe_u32 v13, v0, 4, 1')
    A('v_lshl_add_u32 v10, v13, 5, v10')
    A('v_and_b32 v13, 1, v0')
    A('v_lshl_add_u32 v10, v13, 4, v10')
    A('v_bfe_u32 v13, v0, 1, 1')
    A('v_lshl_add_u32 v10, v13, 3, v10')
    A('s_lshl_b32 s39, s41, 1')
    for mt in range(2):
        A(f's_add_u32 s42, s39, {mt}')
        A('v_xor_b32 v13, s42, v12')
        A(f'v_lshl_add_u32 v{18+mt}, v13, 6, v10')
    C.tstep = 4
    gemm_compute(A, pfx, lambda ks, nt: (14 + ks, nt * 4096))
    A(f's_mov_b32 s51, {f2u(CSCALE):#x}')
    A('s_lshl_b32 s52, s32, 4')
    A('s_lshl_b32 s39, s34, 2')
    A('s_add_u32 s52, s52, s39')
    A('s_lshl_b32 s39, s40, 1')
    A('s_add_u32 s52, s52, s39')
    A('s_lshl_b32 s52, s52, 5')
    A('s_add_u32 s52, s52, s38')
    A('s_lshl_b32 s52, s52, 13')
    A('s_lshl_b32 s39, s41, 12')
    A('s_add_u32 s52, s52, s39')
    A(f's_add_u32 s53, s52, {32*8192}')
    A('v_lshlrev_b32 v10, 4, v0')
    for mt in range(2):
        for nt in range(2):
            c = 64 + (mt * 2 + nt) * 16
            for r in range(16): A(f'v_mul_f32 v{c+r}, s51, v{c+r}')
            for r in range(8): A(f'v_cvt_pk_bf16_f32 v{c+r}, v{c+2*r}, v{c+2*r+1}')
            for aa in range(2):
                A(f'buffer_store_dwordx4 {v(c+4*aa,4)}, v10, s[12:15], s{52+nt} offen offset:{(2*mt+aa)*1024}')
    stamp(A, 5)
    if C.stamps: A('s_waitcnt vmcnt(0)')
    stamp(A, 6); stamp(A, 7, True); stamp_flush(A, 0, 8)
    A.label(f'{pfx}_end')
    A('s_endpgm')
    return kd(name, 128)

def k2(A):
    name = 'attn_kernel'; pfx = 'L2'
    common(A, name, pfx)
    A('s_lshr_b32 s34, s31, 1')
    A('s_and_b32 s35, s31, 1')
    A('s_cmp_eq_u32 s36, 0')
    A(f's_cbranch_scc1 {pfx}_comp')
    if C.prio_loader: A(f's_setprio {C.prio_loader}')
    A('s_lshl_b32 s38, s34, 2')
    A('s_add_u32 s38, s38, s33')
    A('s_lshl_b32 s38, s38, 18')
    A('s_add_u32 s62, s62, s38'); A('s_addc_u32 s63, s63, 0')
    A('s_add_u32 s64, s64, s38'); A('s_addc_u32 s65, s65, 0')
    srd(A, 4, 62, 63, 262144)
    srd(A, 8, 64, 65, 262144)
    A('v_lshrrev_b32 v12, 4, v0')
    A('s_lshl_b32 s39, s37, 4')
    A('v_add_u32 v10, s39, v12')
    A('v_lshlrev_b32 v10, 8, v10')
    A('v_and_b32 v11, 15, v0')
    A('v_xor_b32 v13, v11, v12')
    for i in range(4):
        A(f'v_xor_b32 v14, {4*i}, v13')
        A(f'v_lshl_add_u32 v{2+i}, v14, 4, v10')
    A('v_lshlrev_b32 v13, 2, v12')
    A('v_xor_b32 v13, v11, v13')
    A('v_lshl_add_u32 v6, v13, 4, v10')
    A('s_lshl_b32 s44, s37, 12')
    A('s_mov_b32 s45, 0')
    A(f's_mov_b32 s48, {OOB}')
    A.label(f'{pfx}_lloop')
    A('s_cmp_lt_u32 s45, 2')
    A(f's_cbranch_scc1 {pfx}_lskip')
    A('s_waitcnt vmcnt(8)')
    A('s_barrier')
    A.label(f'{pfx}_lskip')
    A('s_lshl_b32 s47, s45, 14')
    A('s_and_b32 s46, s45, 3')
    A('s_lshl_b32 s46, s46, 14')
    A('s_add_u32 s46, s46, s44')
    loader_issue(A, C.nt_kv, C.nt_kv, [(2+i, True) for i in range(4)], [(6, True)] * 4)
    A('s_mov_b32 s48, s47')
    A('s_add_u32 s45, s45, 1')
    A('s_cmp_lt_u32 s45, 17')
    A(f's_cbranch_scc1 {pfx}_lloop')
    A('s_waitcnt vmcnt(8)'); A('s_barrier')
    A('s_waitcnt vmcnt(0)'); A('s_barrier')
    A('s_endpgm')
    A.label(f'{pfx}_comp')
    if C.prio_compute: A(f's_setprio {C.prio_compute}')
    A('s_lshl_b32 s38, s33, 3')
    A('s_lshl_b32 s39, s35, 2')
    A('s_add_u32 s38, s38, s39')
    A('s_add_u32 s38, s38, s37')
    A('s_lshl_b32 s52, s32, 4')
    A('s_add_u32 s52, s52, s34')
    A('s_lshl_b32 s52, s52, 5')
    A('s_add_u32 s52, s52, s38')
    A('s_lshl_b32 s52, s52, 13')
    A('v_lshlrev_b32 v1, 4, v0')
    A('s_add_u32 s53, s52, 4096')
    for kk in range(8):
        A(f'buffer_load_dwordx4 {v(32+4*kk,4)}, v1, s[12:15], s{52+kk//4} offen offset:{(kk%4)*1024}')
    A('v_and_b32 v10, 31, v0')
    A('v_lshrrev_b32 v11, 5, v0')
    A('v_and_b32 v12, 15, v0')
    A('v_xor_b32 v12, v12, v11')
    A('v_lshlrev_b32 v10, 8, v10')
    for kk in range(8):
        A(f'v_xor_b32 v13, {2*kk}, v12')
        A(f'v_lshl_add_u32 v{16+kk}, v13, 4, v10')
    A('v_bfe_u32 v12, v0, 2, 2')
    A('v_lshl_add_u32 v10, v11, 2, v12')
    A('v_lshlrev_b32 v10, 8, v10')
    A(f'v_add_u32 v10, {BW}, v10')
    A('v_bfe_u32 v13, v0, 4, 1')
    A('v_lshl_add_u32 v10, v13, 5, v10')
    A('v_and_b32 v13, 3, v0')
    A('v_lshl_add_u32 v10, v13, 3, v10')
    for dt in range(4):
        A(f'v_xor_b32 v13, {dt}, v12')
        A(f'v_lshl_add_u32 v{24+dt}, v13, 6, v10')
    for i in range(64): A(f'v_mov_b32 v{64+i}, 0')
    for i in range(8): A(f'v_mov_b32 v{168+i}, 0')
    for i in range(4): A(f'v_mov_b32 v{224+i}, 0')
    A('v_mov_b32 v29, 0')
    F = lambda i: 192 + (i & 7) * 4
    D = 6
    def rd(t, i):
        n = (t + 1) >> 1; slot = n & 3
        if i % 2 == 0:
            kk = i // 2; tile = (t + 1) & 1
            A(f'ds_read_b128 {v(F(i),4)}, v{16+kk} offset:{slot*16384+tile*8192}')
            return 1
        x = i // 2; ks = x >> 2; dt = x & 3; tile = (t + 1) & 1
        for u in range(2):
            A(f'ds_read_b64_tr_b16 {v(F(i)+2*u,2)}, v{24+dt} offset:{slot*16384+(32*tile+16*ks+8*u)*256}')
        return 2
    stamp(A, 2)
    A('s_barrier')
    stamp(A, 3)
    for kk in range(8): A(f'ds_read_b128 {v(F(kk),4)}, v{16+kk}')
    A('s_waitcnt vmcnt(0)')
    for kk in range(8):
        A(f's_waitcnt lgkmcnt({7-kk})')
        A(f'{MFMA} {v(128,16)}, {v(F(kk),4)}, {v(32+kk*4,4)}, {v(128,16) if kk else 0}')
    for i in range(D): rd(0, i)
    A('v_max3_f32 v30, v128, v129, v130')
    for i in range(3, 15, 2): A(f'v_max3_f32 v30, v30, v{128+i}, v{128+i+1}')
    A('v_max_f32 v30, v30, v143')
    A('v_mov_b32 v31, v30')
    A('v_permlane32_swap_b32 v30, v31')
    A('v_max_f32 v30, v30, v31')
    for i in range(16): A(f'v_sub_f32 v{176+i}, 0, v30')
    for i in range(16): A(f'v_sub_f32 v{128+i}, v{128+i}, v30')
    A('s_mov_b32 s49, 0')
    def cnt(i):
        return 1 if i % 2 == 0 else 2
    A.label(f'{pfx}_cloop')
    for t in range(8):
        Sc = 128 + (t & 1) * 16; Sn = 128 + ((t + 1) & 1) * 16
        Pc = 160 + (t & 1) * 8; Pp = 160 + ((t + 1) & 1) * 8
        for i in range(16):
            if i % 2 == 0:
                A(f's_waitcnt lgkmcnt({sum(cnt(x) for x in range(i+2, i+D))})')
                kk = i // 2
                A(f'{MFMA} {v(Sn,16)}, {v(F(i),4)}, {v(32+kk*4,4)}, {v(Sn,16) if kk else v(176,16)}')
            else:
                x = i // 2; ks = x >> 2; dt = x & 3
                A(f'{MFMA} {v(64+dt*16,16)}, {v(F(i),4)}, {v(Pp+ks*4,4)}, {v(64+dt*16,16)}')
            if i: A(f'v_exp_f32 v{224+(i&3)}, v{Sc+i}')
            A(f'v_add_f32 v29, v29, v{224+((i-1)&3)}')
            if i == 0: A(f'v_exp_f32 v{224+(i&3)}, v{Sc+i}')
            if i % 2 == 0:
                dst = (Pc + (i - 2) // 2) if i else (Pp + 7)
                A(f'v_cvt_pk_bf16_f32 v{dst}, v{224+((i-2)&3)}, v{224+((i-1)&3)}')
            if i + D == 16 and t % 2 == 0: A('s_barrier')
            if i + D < 16: rd(t, i + D)
            else: rd(t + 1, i + D - 16)
            if t == 7 and i == 12: A('s_add_u32 s49, s49, 1')
            if t == 7 and i == 14: A('s_cmp_lt_u32 s49, 4')
    A(f's_cbranch_scc1 {pfx}_cloop')
    A('v_add_f32 v29, v29, v227')
    A('v_cvt_pk_bf16_f32 v175, v226, v227')
    A('s_waitcnt lgkmcnt(0)')
    stamp(A, 4)
    for i in (1, 3, 5):
        x = i // 2
        A(f'{MFMA} {v(64+(x&3)*16,16)}, {v(F(i),4)}, {v(168+(x>>2)*4,4)}, {v(64+(x&3)*16,16)}')
    bufs = {7: 7, 9: 0, 11: 2, 13: 4, 15: 6}
    for i in (7, 9, 11, 13, 15):
        x = i // 2; ks = x >> 2; dt = x & 3
        for u in range(2):
            A(f'ds_read_b64_tr_b16 {v(F(bufs[i])+2*u,2)}, v{24+dt} offset:{(32+16*ks+8*u)*256}')
    A('v_mov_b32 v31, v29')
    A('v_permlane32_swap_b32 v29, v31')
    A('v_add_f32 v29, v29, v31')
    A('v_rcp_f32 v29, v29')
    for k, i in enumerate((7, 9, 11, 13, 15)):
        x = i // 2
        A(f's_waitcnt lgkmcnt({8-2*k})')
        A(f'{MFMA} {v(64+(x&3)*16,16)}, {v(F(bufs[i]),4)}, {v(168+(x>>2)*4,4)}, {v(64+(x&3)*16,16)}')
    A(f's_add_u32 s52, s52, {OF_OFF}')
    A(f's_add_u32 s53, s53, {OF_OFF}')
    for dt in range(4):
        c = 64 + dt * 16
        for r in range(16): A(f'v_mul_f32 v{c+r}, v{c+r}, v29')
        for r in range(8): A(f'v_cvt_pk_bf16_f32 v{c+r}, v{c+2*r}, v{c+2*r+1}')
        for aa in range(2):
            kk = dt * 2 + aa
            A(f'buffer_store_dwordx4 {v(c+4*aa,4)}, v1, s[12:15], s{52+kk//4} offen offset:{(kk%4)*1024}')
    stamp(A, 5)
    if C.stamps: A('s_waitcnt vmcnt(0)')
    stamp(A, 6); stamp(A, 7, True); stamp_flush(A, 1, 8)
    A.label(f'{pfx}_end')
    A('s_endpgm')
    return kd(name, 232)

def k3(A):
    name = 'oproj_kernel'; pfx = 'L3'
    common(A, name, pfx)
    A('s_and_b32 s34, s31, 3')
    A('s_lshr_b32 s35, s31, 2')
    A('s_cmp_eq_u32 s36, 0')
    A(f's_cbranch_scc1 {pfx}_comp')
    if C.prio_loader: A(f's_setprio {C.prio_loader}')
    srd(A, 4, 68, 69, 4096 * 2048)
    srd(A, 8, 74, 75, WS_BYTES)
    A('s_lshl_b32 s42, s33, 21')
    A('s_lshl_b32 s39, s35, 8')
    A('s_add_u32 s42, s42, s39')
    rowswz_voff(A, 11, 42)
    A('s_lshl_b32 s42, s32, 4')
    A('s_lshl_b32 s39, s34, 2')
    A('s_add_u32 s42, s42, s39')
    A('s_add_u32 s42, s42, s37')
    A('s_lshl_b32 s42, s42, 5')
    A('s_lshl_b32 s39, s33, 3')
    A('s_add_u32 s42, s42, s39')
    A('s_lshl_b32 s42, s42, 13')
    A(f's_add_u32 s42, s42, {OF_OFF}')
    A('v_lshlrev_b32 v6, 4, v0')
    A('v_add_u32 v6, s42, v6')
    A('s_lshl_b32 s43, s35, 1')
    A('s_lshl_b32 s39, s34, 2')
    A('s_add_u32 s43, s43, s39')
    gemm_loader_loop(A, pfx, 17, 12, C.nt_wo, '', [(2+i, False) for i in range(4)], [(6, True)] * 4)
    A('s_endpgm')
    A.label(f'{pfx}_comp')
    if C.prio_compute: A(f's_setprio {C.prio_compute}')
    A('s_and_b32 s40, s37, 1')
    A('s_lshr_b32 s41, s37, 1')
    A('v_lshlrev_b32 v1, 4, v0')
    A('s_lshl_b32 s39, s40, 13')
    A(f's_add_u32 s39, s39, {BW}')
    A('v_add_u32 v14, s39, v1')
    A('v_lshrrev_b32 v11, 5, v0')
    A('v_bfe_u32 v12, v0, 2, 2')
    A('v_lshl_add_u32 v10, v11, 2, v12')
    A('v_lshlrev_b32 v10, 8, v10')
    A('v_and_b32 v13, 1, v0')
    A('v_lshl_add_u32 v10, v13, 5, v10')
    A('v_bfe_u32 v13, v0, 4, 1')
    A('v_lshl_add_u32 v10, v13, 4, v10')
    A('v_bfe_u32 v13, v0, 1, 1')
    A('v_lshl_add_u32 v10, v13, 3, v10')
    A('s_lshl_b32 s39, s41, 1')
    for mt in range(2):
        A(f's_add_u32 s42, s39, {mt}')
        A('v_xor_b32 v13, s42, v12')
        A(f'v_lshl_add_u32 v{18+mt}, v13, 6, v10')
    C.tstep = 8
    gemm_compute(A, pfx, lambda ks, nt: (14, nt * 4096 + ks * 1024))
    A('s_lshl_b32 s50, s32, 5')
    A('s_add_u32 s50, s50, s31')
    A('s_lshl_b32 s52, s50, 18')
    A('s_lshl_b32 s39, s37, 12')
    A('s_add_u32 s52, s52, s39')
    A(f's_add_u32 s52, s52, {PT_OFF}')
    A('s_lshl_b32 s39, s33, 14')
    A('s_add_u32 s53, s52, s39')
    for d in range(4):
        A(f's_cmp_eq_u32 s33, {d}')
        A(f's_cbranch_scc1 {pfx}_st{d}')
        A(f's_add_u32 s54, s53, {d*65536}')
        for q in range(4):
            A(f'buffer_store_dwordx4 {v(64+d*16+q*4,4)}, v1, s[12:15], s54 offen offset:{q*1024} sc1')
        A(f's_branch {pfx}_sn{d}')
        A.label(f'{pfx}_st{d}')
        for r in range(16): A(f'v_mov_b32 v{128+r}, v{64+d*16+r}')
        A.label(f'{pfx}_sn{d}')
    A('s_lshl_b32 s55, s50, 2')
    A('s_add_u32 s55, s55, s37')
    A('s_lshl_b32 s55, s55, 7')
    A(f's_add_u32 s55, s55, {FL_OFF}')
    A('s_lshl_b32 s39, s33, 2')
    A('v_mov_b32 v20, s39')
    A('v_mov_b32 v21, 1')
    A('s_waitcnt vmcnt(0)')
    stamp(A, 5)
    A('s_mov_b64 exec, 1')
    A('buffer_store_dword v21, v20, s[12:15], s55 offen sc1')
    A('s_mov_b64 exec, -1')
    A('v_and_b32 v20, 3, v0')
    A('v_lshlrev_b32 v20, 2, v20')
    A('s_mov_b32 s56, 0')
    A.label(f'{pfx}_poll')
    A('buffer_load_dword v22, v20, s[12:15], s55 offen sc1')
    A('s_add_u32 s56, s56, 1')
    A('s_cmp_ge_u32 s56, 0x100000')
    A(f's_cbranch_scc1 {pfx}_go')
    A('s_waitcnt vmcnt(0)')
    A('v_cmp_eq_u32 vcc, 1, v22')
    A('s_cmp_eq_u64 vcc, -1')
    A(f's_cbranch_scc0 {pfx}_poll')
    A.label(f'{pfx}_go')
    stamp(A, 8)
    A('s_lshl_b32 s39, s33, 16')
    A('s_add_u32 s52, s52, s39')
    for k in range(1, 4):
        A(f's_add_u32 s39, s33, {k}')
        A('s_and_b32 s39, s39, 3')
        A('s_lshl_b32 s39, s39, 14')
        A('s_add_u32 s54, s52, s39')
        for q in range(4):
            A(f'buffer_load_dwordx4 {v(128+k*16+q*4,4)}, v1, s[12:15], s54 offen offset:{q*1024} sc1')
    srd(A, 16, 70, 71, 512 * 4096)
    A('s_lshl_b32 s39, s34, 7')
    A('s_lshl_b32 s42, s40, 6')
    A('s_add_u32 s39, s39, s42')
    A('s_and_b32 s42, s33, 1')
    A('s_lshl_b32 s42, s42, 5')
    A('s_add_u32 s39, s39, s42')
    A('v_and_b32 v20, 31, v0')
    A('v_add_u32 v20, s39, v20')
    A('v_lshlrev_b32 v20, 12, v20')
    A('v_lshl_add_u32 v20, v11, 5, v20')
    A('s_lshl_b32 s39, s32, 11')
    A('s_lshl_b32 s42, s35, 8')
    A('s_add_u32 s39, s39, s42')
    A('s_lshl_b32 s42, s41, 7')
    A('s_add_u32 s39, s39, s42')
    A('s_lshr_b32 s42, s33, 1')
    A('s_lshl_b32 s42, s42, 6')
    A('s_add_u32 s39, s39, s42')
    for k in range(1, 4):
        A(f's_waitcnt vmcnt({4*(3-k)})')
        for r in range(16): A(f'v_add_f32 v{128+r}, v{128+r}, v{128+k*16+r}')
    for r in range(8): A(f'v_cvt_pk_bf16_f32 v{128+r}, v{128+2*r}, v{128+2*r+1}')
    A('buffer_store_dwordx4 v[128:131], v20, s[16:19], s39 offen')
    A('buffer_store_dwordx4 v[132:135], v20, s[16:19], s39 offen offset:16')
    if C.stamps: A('s_waitcnt vmcnt(0)')
    stamp(A, 6); stamp(A, 7, True); stamp_flush(A, 2, 9)
    A.label(f'{pfx}_end')
    A('s_endpgm')
    return kd(name, 192)

def main(out):
    A = Asm()
    kds = [k1(A), k2(A), k3(A)]
    body = A.finish()
    txt = HDR
    for k in ('qproj', 'attn', 'oproj'):
        txt += f'; @launch kernel={k}_kernel grid=(256,1,1) block=(512,1,1) lds=131072\n'
    txt += '.amdgcn_target "amdgcn-amd-amdhsa--gfx950"\n.text\n' + body + '\n.section .rodata,"a"\n' + ''.join(kds)
    open(out, 'w').write(txt)

if __name__ == '__main__':
    out = sys.argv[1] if len(sys.argv) > 1 else f'cdna_kernels/{NAME}.s'
    for o in sys.argv[2:]:
        k, val = o.split('=')
        cur = getattr(C, k)
        setattr(C, k, int(val) if isinstance(cur, int) else (' ' + val if val else ''))
    main(out)
```

```python
import sys, math, struct
sys.path.insert(0, 'gen')
from asmlib import *

NAME = 'concat_heads__gqa_block_cached__gqa_block_cached__near_ridge'
HDR = open('cdna_kernels/%s.s.ref' % NAME).read().split('; Override launch')[0]
QF_OFF = 0
OF_OFF = 8 << 20
PT_OFF = 16 << 20
FL_OFF = 32 << 20
QFL = FL_OFF; OFL = FL_OFF + (32 << 10); XFL = FL_OFF + (64 << 10)
WS_BYTES = 48 << 20
ST_OFF = 40 << 20
MFMA = 'v_mfma_f32_32x32x16_bf16'
def f2u(x): return struct.unpack('<I', struct.pack('<f', x))[0]
CSCALE = math.log2(math.e) / math.sqrt(128.0)
OOB = 0x10000000
BW = 65536
MODE_LDS = 131072
SPIN = 0x200000

class Cfg:
    nt_w = ''; nt_x = ''; nt_kv = ' nt'; nt_wo = ''
    prio_loader = 0; prio_compute = 0
    stamps = 0
    force_slow = 0
    force_fb = 0
C = Cfg()

def srd(A, d, lo, hi, nbytes):
    A(f's_mov_b32 s{d}, s{lo}'); A(f's_mov_b32 s{d+1}, s{hi}')
    A(f's_mov_b32 s{d+2}, {nbytes}'); A(f's_mov_b32 s{d+3}, 0x20000')
def stamp(A, k, cyc=False):
    if not C.stamps: return
    A(f's_mem{"" if cyc else "real"}time s[98:99]')
    A('s_waitcnt lgkmcnt(0)')
    A(f's_mov_b32 s{76+k}, s98')
def stamp_flush(A):
    if not C.stamps: return
    A('s_lshl_b32 s39, s36, 8')
    A('s_add_u32 s39, s39, s2')
    A('s_lshl_b32 s39, s39, 3')
    A('s_add_u32 s39, s39, s37')
    A('s_lshl_b32 s39, s39, 6')
    A(f's_add_u32 s39, s39, {ST_OFF}')
    A('v_mov_b32 v10, 0')
    for k in range(16):
        A(f'v_mov_b32 v11, s{76+k}')
        A(f'buffer_store_dword v11, v10, s[12:15], s39 offen offset:{4*k}')

def poll(A, lab, vaddr, soff, vtmp):
    A('s_mov_b32 s56, 0')
    A.label(lab)
    A(f'buffer_load_dword v{vtmp}, v{vaddr}, s[12:15], s{soff} offen sc1')
    A('s_add_u32 s56, s56, 1')
    A(f's_cmp_ge_u32 s56, {SPIN}')
    A(f's_cbranch_scc1 {lab}_go')
    A('s_waitcnt vmcnt(0)')
    A(f'v_cmp_eq_u32 vcc, 1, v{vtmp}')
    A('s_cmp_eq_u64 vcc, -1')
    A(f's_cbranch_scc0 {lab}')
    A.label(lab + '_go')

def acquire_if_slow(A, lab):
    A('s_cmp_eq_u32 s57, 1')
    A(f's_cbranch_scc1 {lab}')
    A('buffer_inv sc1')
    A('s_waitcnt vmcnt(0)')
    A.label(lab)

def publish(A, lab, soff, dword_sgpr_bytes):
    A(f'v_mov_b32 v20, s{dword_sgpr_bytes}')
    A('v_mov_b32 v21, 1')
    A('s_waitcnt vmcnt(0)')
    A('s_mov_b64 exec, 1')
    A('s_cmp_eq_u32 s57, 1')
    A(f's_cbranch_scc1 {lab}_f')
    A('buffer_wbl2 sc1')
    A('s_waitcnt vmcnt(0)')
    A(f'buffer_store_dword v21, v20, s[12:15], s{soff} offen sc1')
    A(f's_branch {lab}_d')
    A.label(lab + '_f')
    A(f'buffer_store_dword v21, v20, s[12:15], s{soff} offen')
    A.label(lab + '_d')
    A('s_mov_b64 exec, -1')

class Loader:
    def __init__(self, A): self.A = A; self.n = 0; self.tags = {}
    def dma(self, reg, srdn, soff, off, mod):
        o = f' offset:{off}' if off else ''
        self.A(f'buffer_load_dwordx4 v{reg}, s[{srdn}:{srdn+3}], s{soff} offen{o}{mod} lds'); self.n += 1
    def group(self, tag, lds, regs, trick, srdn, soff, mod):
        A = self.A
        A(f's_add_u32 m0, s44, {lds}')
        for i in range(4):
            if trick: self.dma(regs[i], srdn, soff, i * 1024, mod)
            else:
                if i: A('s_add_u32 m0, m0, 1024')
                self.dma(regs[i], srdn, soff, 0, mod)
        self.tags[tag] = self.n
    def wait(self, *tags):
        k = max(self.tags[t] for t in tags if t in self.tags)
        self.A(f's_waitcnt vmcnt({min(63, self.n - k)})')

def rowswz_voff(A, dst, pitch_shift, colbase_sgpr):
    A('v_lshrrev_b32 v32, 4, v0')
    A('s_lshl_b32 s39, s37, 4')
    A('v_add_u32 v30, s39, v32')
    A(f'v_lshlrev_b32 v30, {pitch_shift}, v30')
    A('v_and_b32 v31, 15, v0')
    A('v_lshlrev_b32 v33, 2, v32')
    A('v_xor_b32 v31, v31, v33')
    A('v_lshl_add_u32 v30, v31, 4, v30')
    A(f'v_add_u32 v{dst}, s{colbase_sgpr}, v30')
    for i in range(1, 4): A(f'v_add_u32 v{dst+i}, {(i*4) << pitch_shift}, v{dst}')

def loader(A):
    L = Loader(A)
    if C.prio_loader: A(f's_setprio {C.prio_loader}')
    A('s_and_b32 s34, s31, 3')
    A('s_lshr_b32 s35, s31, 2')
    srd(A, 4, 66, 67, 1024 * 8192)
    srd(A, 8, 60, 61, 512 * 2048)
    A('s_lshl_b32 s42, s33, 3')
    A('s_add_u32 s42, s42, s35')
    A('s_lshl_b32 s42, s42, 8')
    rowswz_voff(A, 2, 13, 42)
    A('s_lshl_b32 s42, s34, 7')
    A('s_lshl_b32 s39, s37, 5')
    A('s_add_u32 s42, s42, s39')
    A('v_lshrrev_b32 v30, 3, v0')
    A('v_add_u32 v30, s42, v30')
    A('v_lshlrev_b32 v30, 11, v30')
    A('v_and_b32 v31, 7, v0')
    A('v_xor_b32 v31, v31, v32')
    A('v_lshl_add_u32 v6, v31, 4, v30')
    A('v_xor_b32 v31, 4, v31')
    A('v_lshl_add_u32 v7, v31, 4, v30')
    A(f'v_add_u32 v7, {8*2048}, v7')
    A(f'v_add_u32 v8, {16*2048}, v6')
    A(f'v_add_u32 v9, {16*2048}, v7')
    A('s_lshl_b32 s43, s35, 1')
    A('s_lshl_b32 s39, s34, 2')
    A('s_add_u32 s43, s43, s39')
    A('s_lshl_b32 s44, s37, 12')
    def chunk(m):
        A(f's_add_u32 s46, s43, {m}')
        A('s_and_b32 s46, s46, 15')
    def S1(m):
        chunk(m)
        A('s_lshl_b32 s47, s46, 19')
        A('s_lshl_b32 s48, s46, 7')
        L.group(('a1', m), (m & 3) * 16384, [2, 3, 4, 5], False, 4, 47, C.nt_w)
        L.group(('b1', m), BW + (m & 3) * 16384, [6, 7, 8, 9], False, 8, 48, C.nt_x)
    def S2(n):
        if n < 16:
            A(f's_mov_b32 s47, {n*16384}')
            L.group(('a2', n), (n & 3) * 16384, [12, 13, 14, 15], True, 20, 47, C.nt_kv)
        A(f's_mov_b32 s48, {(n-1)*16384 if n else OOB}')
        L.group(('b2', n), BW + (n & 3) * 16384, [16] * 4, True, 24, 48, C.nt_kv)
    def W3(m):
        chunk(m)
        A('s_lshl_b32 s47, s46, 17')
        L.group(('a3', m), (m & 3) * 16384, [17, 18, 19, 20], False, 52, 47, C.nt_wo)
    def O3(m):
        chunk(m)
        A('s_lshl_b32 s48, s46, 12')
        L.group(('b3', m), BW + (m & 3) * 16384, [21] * 4, True, 12, 48, ' sc1')
    S1(0); S1(1); S1(2)
    A('s_lshr_b32 s38, s31, 1')
    A('s_lshl_b32 s38, s38, 2')
    A('s_add_u32 s38, s38, s33')
    A('s_lshl_b32 s38, s38, 18')
    A('s_add_u32 s62, s62, s38'); A('s_addc_u32 s63, s63, 0')
    A('s_add_u32 s64, s64, s38'); A('s_addc_u32 s65, s65, 0')
    srd(A, 20, 62, 63, 262144)
    srd(A, 24, 64, 65, 262144)
    A('s_lshl_b32 s39, s37, 4')
    A('v_add_u32 v30, s39, v32')
    A('v_lshlrev_b32 v30, 8, v30')
    A('v_and_b32 v31, 15, v0')
    A('v_xor_b32 v33, v31, v32')
    for i in range(4):
        A(f'v_xor_b32 v34, {4*i}, v33')
        A(f'v_lshl_add_u32 v{12+i}, v34, 4, v30')
    A('v_lshlrev_b32 v33, 2, v32')
    A('v_xor_b32 v33, v31, v33')
    A('v_lshl_add_u32 v16, v33, 4, v30')
    srd(A, 52, 68, 69, 4096 * 2048)
    A('s_lshl_b32 s42, s33, 21')
    A('s_lshl_b32 s39, s35, 8')
    A('s_add_u32 s42, s42, s39')
    rowswz_voff(A, 17, 11, 42)
    A('s_lshl_b32 s40, s34, 2')
    A('s_add_u32 s40, s40, s37')
    A('s_lshl_b32 s42, s32, 4')
    A('s_add_u32 s42, s42, s40')
    A('s_lshl_b32 s42, s42, 5')
    A('s_lshl_b32 s39, s33, 3')
    A('s_add_u32 s42, s42, s39')
    A('s_lshl_b32 s42, s42, 13')
    A(f's_add_u32 s42, s42, {OF_OFF}')
    A('v_lshlrev_b32 v21, 4, v0')
    A('v_add_u32 v21, s42, v21')
    A('s_lshl_b32 s41, s30, 4')
    A('s_add_u32 s41, s41, s40')
    A('s_lshl_b32 s41, s41, 7')
    A(f's_add_u32 s41, s41, {OFL}')
    A('v_and_b32 v22, 7, v0')
    A('v_lshlrev_b32 v22, 2, v22')
    A(f'v_mov_b32 v24, {MODE_LDS}')
    for m in range(16):
        L.wait(('a1', m), ('b1', m)); A('s_barrier')
        if m + 3 <= 15: S1(m + 3)
        else: S2(m + 3 - 16)
    A('s_barrier')
    S2(3)
    for n in range(17):
        L.wait(('a2', n), ('b2', n)); A('s_barrier')
        if n >= 2 and n + 2 <= 16: S2(n + 2)
        if n >= 14: W3(n - 14)
    A('ds_read_b32 v25, v24')
    A('s_barrier')
    W3(3)
    A('s_waitcnt lgkmcnt(0)')
    A('v_readfirstlane_b32 s57, v25')
    stamp(A, 2)
    poll(A, 'L_opoll', 22, 41, 23)
    acquire_if_slow(A, 'L_oacq')
    stamp(A, 3)
    for m in range(4): O3(m)
    for m in range(16):
        L.wait(('a3', m), ('b3', m)); A('s_barrier')
        if m >= 1 and m + 3 <= 15:
            W3(m + 3); O3(m + 3)
    stamp(A, 6); stamp(A, 7, True); stamp_flush(A)
    A('s_endpgm')

def gemm_compute(A, pfx, breg, tstep, top=None, last_barrier=True, st0=None):
    def reads(slot, ks):
        p = ks & 1
        for mt in range(2):
            for t in range(2):
                A(f'ds_read_b64_tr_b16 {v(32+p*16+mt*4+t*2,2)}, v{18+mt} offset:{slot*16384+(16*ks+tstep*t)*256}')
        for nt in range(2):
            r, imm = breg(ks, nt)
            A(f'ds_read_b128 {v(40+p*16+nt*4,4)}, v{r} offset:{slot*16384+imm}')
    for i in range(64): A(f'v_mov_b32 v{64+i}, 0')
    A('s_mov_b32 s49, 0')
    A('s_barrier')
    if st0 is not None: stamp(A, st0)
    reads(0, 0)
    A.label(f'{pfx}_cloop')
    if top: top()
    for slot in range(4):
        for ks in range(4):
            if ks < 3:
                reads(slot, ks + 1)
                A('s_waitcnt lgkmcnt(6)')
            else:
                A('s_waitcnt lgkmcnt(0)')
                if slot == 3:
                    A('s_add_u32 s49, s49, 1')
                    A('s_cmp_eq_u32 s49, 4')
                    A(f's_cbranch_scc1 {pfx}_clast')
                A('s_barrier')
                reads((slot + 1) & 3, 0)
            p = ks & 1
            for mt in range(2):
                for nt in range(2):
                    c = 64 + (mt * 2 + nt) * 16
                    A(f'{MFMA} {v(c,16)}, {v(32+p*16+mt*4,4)}, {v(40+p*16+nt*4,4)}, {v(c,16)}')
    A(f's_branch {pfx}_cloop')
    A.label(f'{pfx}_clast')
    if last_barrier: A('s_barrier')
    for mt in range(2):
        for nt in range(2):
            c = 64 + (mt * 2 + nt) * 16
            A(f'{MFMA} {v(c,16)}, {v(48+mt*4,4)}, {v(56+nt*4,4)}, {v(c,16)}')

def compute(A):
    if C.prio_compute: A(f's_setprio {C.prio_compute}')
    A('s_and_b32 s34, s31, 3')
    A('s_lshr_b32 s35, s31, 2')
    A('s_lshr_b32 s58, s31, 1')
    A('s_and_b32 s59, s31, 1')
    A('s_lshl_b32 s50, s32, 5')
    A('s_add_u32 s50, s50, s31')
    srd(A, 16, 72, 73, 256)
    A('s_getreg_b32 s45, hwreg(HW_REG_XCC_ID, 0, 4)')
    A('s_and_b32 s45, s45, 7')
    A('s_lshl_b32 s45, s45, 3')
    A('s_cmp_lg_u32 s37, 0')
    A('s_cbranch_scc1 L_noinit')
    A('v_and_b32 v10, 3, v0')
    A('s_lshl_b32 s39, s2, 7')
    A(f's_add_u32 s39, s39, {QFL}')
    A('v_lshl_add_u32 v11, v10, 2, s39')
    A('s_lshl_b32 s39, s30, 4')
    A('s_add_u32 s39, s39, s58')
    A('s_lshl_b32 s39, s39, 3')
    A('s_add_u32 s39, s39, s59')
    A('s_lshl_b32 s39, s39, 4')
    A(f's_add_u32 s39, s39, {OFL}')
    A('v_lshl_add_u32 v12, v10, 2, s39')
    A('s_lshl_b32 s39, s50, 9')
    A('s_lshl_b32 s42, s33, 2')
    A('s_add_u32 s39, s39, s42')
    A(f's_add_u32 s39, s39, {XFL}')
    A('v_lshl_add_u32 v13, v10, 7, s39')
    A('v_mov_b32 v14, 0')
    A('s_mov_b64 exec, 15')
    for r in (11, 12, 13): A(f'buffer_store_dword v14, v{r}, s[12:15], 0 offen sc1')
    A('s_lshl_b64 s[42:43], 1, s45')
    A('v_mov_b32 v14, s42'); A('v_mov_b32 v15, s43')
    A('s_lshl_b32 s39, s30, 3')
    A('v_mov_b32 v11, s39')
    A('s_mov_b64 exec, 1')
    A('s_waitcnt vmcnt(0)')
    A('buffer_atomic_add_x2 v[14:15], v11, s[16:19], 0 offen sc1')
    A('s_mov_b64 exec, -1')
    A.label('L_noinit')
    A('v_and_b32 v28, 3, v0')
    A('s_lshl_b32 s39, s32, 5')
    A('v_lshl_add_u32 v28, v28, 3, s39')
    A('s_and_b32 s40, s37, 1')
    A('s_lshr_b32 s41, s37, 1')
    A('v_and_b32 v10, 31, v0')
    A('v_lshrrev_b32 v11, 5, v0')
    A('v_bfe_u32 v12, v0, 1, 3')
    A('v_xor_b32 v12, v12, v11')
    A('s_lshl_b32 s39, s40, 6')
    A('v_add_u32 v10, s39, v10')
    A('v_lshlrev_b32 v10, 7, v10')
    A(f'v_add_u32 v10, {BW}, v10')
    for ks in range(4):
        A(f'v_xor_b32 v13, {2*ks}, v12')
        A(f'v_lshl_add_u32 v{14+ks}, v13, 4, v10')
    A('v_bfe_u32 v12, v0, 2, 2')
    A('v_lshl_add_u32 v10, v11, 3, v12')
    A('v_lshlrev_b32 v10, 8, v10')
    A('v_bfe_u32 v13, v0, 4, 1')
    A('v_lshl_add_u32 v10, v13, 5, v10')
    A('v_and_b32 v13, 1, v0')
    A('v_lshl_add_u32 v10, v13, 4, v10')
    A('v_bfe_u32 v13, v0, 1, 1')
    A('v_lshl_add_u32 v10, v13, 3, v10')
    A('s_lshl_b32 s39, s41, 1')
    for mt in range(2):
        A(f's_add_u32 s42, s39, {mt}')
        A('v_xor_b32 v13, s42, v12')
        A(f'v_lshl_add_u32 v{18+mt}, v13, 6, v10')
    A('v_lshlrev_b32 v1, 4, v0')
    A(f's_mov_b32 s51, {f2u(CSCALE):#x}')
    A('s_lshl_b32 s38, s33, 3')
    A('s_add_u32 s38, s38, s35')
    A('s_lshl_b32 s52, s32, 4')
    A('s_lshl_b32 s39, s34, 2')
    A('s_add_u32 s52, s52, s39')
    A('s_lshl_b32 s39, s40, 1')
    A('s_add_u32 s52, s52, s39')
    A('s_lshl_b32 s52, s52, 5')
    A('s_add_u32 s52, s52, s38')
    A('s_lshl_b32 s52, s52, 13')
    A('s_lshl_b32 s39, s41, 12')
    A('s_add_u32 s52, s52, s39')
    A(f's_add_u32 s53, s52, {32*8192}')
    gemm_compute(A, 'L1', lambda ks, nt: (14 + ks, nt * 4096), 4,
                 top=lambda: A('buffer_load_dwordx2 v[30:31], v28, s[16:19], 0 offen sc1'), st0=2)
    stamp(A, 3)
    A('s_mov_b32 s56, 0')
    A.label('L_mode')
    A('s_waitcnt vmcnt(0)')
    A('v_sad_u8 v22, v30, 0, 0')
    A('v_sad_u8 v22, v31, 0, v22')
    A('v_cmp_eq_u32 vcc, 32, v22')
    A('s_cmp_eq_u64 vcc, -1')
    A('s_cbranch_scc1 L_mode_ok')
    A('buffer_load_dwordx2 v[30:31], v28, s[16:19], 0 offen sc1')
    A('s_add_u32 s56, s56, 1')
    A(f's_cmp_lt_u32 s56, {SPIN}')
    A('s_cbranch_scc1 L_mode')
    A.label('L_mode_ok')
    A('v_readlane_b32 s42, v30, s33')
    A('v_readlane_b32 s43, v31, s33')
    A('s_lshl_b64 s[46:47], 32, s45')
    A('s_cmp_eq_u64 s[42:43], s[46:47]')
    A(f's_cselect_b32 s57, {0 if C.force_slow else 1}, 0')
    for mt in range(2):
        for nt in range(2):
            c = 64 + (mt * 2 + nt) * 16
            for r in range(16): A(f'v_mul_f32 v{c+r}, s51, v{c+r}')
            for r in range(8): A(f'v_cvt_pk_bf16_f32 v{c+r}, v{c+2*r}, v{c+2*r+1}')
            for aa in range(2):
                A(f'buffer_store_dwordx4 {v(c+4*aa,4)}, v1, s[12:15], s{52+nt} offen offset:{(2*mt+aa)*1024}')
    A('s_lshl_b32 s55, s2, 7')
    A(f's_add_u32 s55, s55, {QFL}')
    A('s_lshl_b32 s39, s37, 2')
    publish(A, 'L_qpub', 55, 39)
    stamp(A, 4)
    A(f'v_mov_b32 v22, {MODE_LDS}')
    A('v_mov_b32 v23, s57')
    A('ds_write_b32 v22, v23')
    A('s_lshl_b32 s39, s59, 2')
    A('s_add_u32 s38, s39, s37')
    A('s_lshl_b32 s55, s38, 2')
    A('s_lshr_b32 s39, s58, 2')
    A('s_add_u32 s55, s55, s39')
    A('s_lshl_b32 s55, s55, 3')
    A('s_add_u32 s55, s55, s30')
    A('s_lshl_b32 s55, s55, 7')
    A('s_and_b32 s39, s58, 2')
    A('s_lshl_b32 s39, s39, 1')
    A('s_add_u32 s55, s55, s39')
    A(f's_add_u32 s55, s55, {QFL}')
    A('v_and_b32 v20, 1, v0')
    A('v_lshlrev_b32 v20, 3, v20')
    A('s_lshl_b32 s52, s32, 4')
    A('s_add_u32 s52, s52, s58')
    A('s_lshl_b32 s52, s52, 2')
    A('s_add_u32 s52, s52, s33')
    A('s_lshl_b32 s52, s52, 3')
    A('s_add_u32 s52, s52, s38')
    A('s_lshl_b32 s52, s52, 13')
    A('s_add_u32 s53, s52, 4096')
    poll(A, 'L_qpoll', 20, 55, 21)
    acquire_if_slow(A, 'L_qacq')
    stamp(A, 5)
    for kk in range(8):
        A(f'buffer_load_dwordx4 {v(32+4*kk,4)}, v1, s[12:15], s{52+kk//4} offen offset:{(kk%4)*1024} sc1')
    A('v_and_b32 v10, 31, v0')
    A('v_and_b32 v12, 15, v0')
    A('v_xor_b32 v12, v12, v11')
    A('v_lshlrev_b32 v10, 8, v10')
    for kk in range(8):
        A(f'v_xor_b32 v13, {2*kk}, v12')
        A(f'v_lshl_add_u32 v{16+kk}, v13, 4, v10')
    A('v_bfe_u32 v12, v0, 2, 2')
    A('v_lshl_add_u32 v10, v11, 2, v12')
    A('v_lshlrev_b32 v10, 8, v10')
    A(f'v_add_u32 v10, {BW}, v10')
    A('v_bfe_u32 v13, v0, 4, 1')
    A('v_lshl_add_u32 v10, v13, 5, v10')
    A('v_and_b32 v13, 3, v0')
    A('v_lshl_add_u32 v10, v13, 3, v10')
    for dt in range(4):
        A(f'v_xor_b32 v13, {dt}, v12')
        A(f'v_lshl_add_u32 v{24+dt}, v13, 6, v10')
    for i in range(64): A(f'v_mov_b32 v{64+i}, 0')
    for i in range(8): A(f'v_mov_b32 v{168+i}, 0')
    for i in range(4): A(f'v_mov_b32 v{224+i}, 0')
    A('v_mov_b32 v29, 0')
    F = lambda i: 192 + (i & 7) * 4
    D = 6
    def rd(t, i):
        n = (t + 1) >> 1; slot = n & 3
        if i % 2 == 0:
            kk = i // 2; tile = (t + 1) & 1
            A(f'ds_read_b128 {v(F(i),4)}, v{16+kk} offset:{slot*16384+tile*8192}')
            return
        x = i // 2; ks = x >> 2; dt = x & 3; tile = (t + 1) & 1
        for u in range(2):
            A(f'ds_read_b64_tr_b16 {v(F(i)+2*u,2)}, v{24+dt} offset:{slot*16384+(32*tile+16*ks+8*u)*256}')
    A('s_waitcnt lgkmcnt(0)')
    A('s_barrier')
    for kk in range(8): A(f'ds_read_b128 {v(F(kk),4)}, v{16+kk}')
    for kk in range(8):
        A(f's_waitcnt vmcnt({7-kk}) lgkmcnt({7-kk})')
        A(f'{MFMA} {v(128,16)}, {v(F(kk),4)}, {v(32+kk*4,4)}, {v(128,16) if kk else 0}')
    stamp(A, 8)
    for i in range(D): rd(0, i)
    A('v_max3_f32 v30, v128, v129, v130')
    for i in range(3, 15, 2): A(f'v_max3_f32 v30, v30, v{128+i}, v{128+i+1}')
    A('v_max_f32 v30, v30, v143')
    A('v_mov_b32 v31, v30')
    A('v_permlane32_swap_b32 v30, v31')
    A('v_max_f32 v30, v30, v31')
    for i in range(16): A(f'v_sub_f32 v{176+i}, 0, v30')
    for i in range(16): A(f'v_sub_f32 v{128+i}, v{128+i}, v30')
    A('s_mov_b32 s49, 0')
    cnt = lambda i: 1 if i % 2 == 0 else 2
    A.label('L2_cloop')
    for t in range(8):
        Sc = 128 + (t & 1) * 16; Sn = 128 + ((t + 1) & 1) * 16
        Pc = 160 + (t & 1) * 8; Pp = 160 + ((t + 1) & 1) * 8
        for i in range(16):
            if i % 2 == 0:
                A(f's_waitcnt lgkmcnt({sum(cnt(x) for x in range(i+2, i+D))})')
                kk = i // 2
                A(f'{MFMA} {v(Sn,16)}, {v(F(i),4)}, {v(32+kk*4,4)}, {v(Sn,16) if kk else v(176,16)}')
            else:
                x = i // 2; ks = x >> 2; dt = x & 3
                A(f'{MFMA} {v(64+dt*16,16)}, {v(F(i),4)}, {v(Pp+ks*4,4)}, {v(64+dt*16,16)}')
            if i + D == 16 and t % 2 == 0: A('s_barrier')
            if i + D < 16: rd(t, i + D)
            else: rd(t + 1, i + D - 16)
            A(f'v_exp_f32 v{224+(i&3)}, v{Sc+i}')
            A(f'v_add_f32 v29, v29, v{224+((i-1)&3)}')
            if i % 2 == 0:
                dst = (Pc + (i - 2) // 2) if i else (Pp + 7)
                A(f'v_cvt_pk_bf16_f32 v{dst}, v{224+((i-2)&3)}, v{224+((i-1)&3)}')
            if t == 7 and i == 12: A('s_add_u32 s49, s49, 1')
            if t == 7 and i == 14: A('s_cmp_lt_u32 s49, 4')
    A('s_cbranch_scc1 L2_cloop')
    A('v_add_f32 v29, v29, v227')
    A('v_cvt_pk_bf16_f32 v175, v226, v227')
    A('s_waitcnt lgkmcnt(0)')
    stamp(A, 9)
    bufs = {7: 7, 9: 0, 11: 2, 13: 4, 15: 6}
    for i in (7, 9, 11, 13, 15):
        x = i // 2; ks = x >> 2; dt = x & 3
        for u in range(2):
            A(f'ds_read_b64_tr_b16 {v(F(bufs[i])+2*u,2)}, v{24+dt} offset:{(32+16*ks+8*u)*256}')
    for i in (1, 3, 5):
        x = i // 2
        A(f'{MFMA} {v(64+(x&3)*16,16)}, {v(F(i),4)}, {v(168+(x>>2)*4,4)}, {v(64+(x&3)*16,16)}')
    A('v_mov_b32 v31, v29')
    A('v_permlane32_swap_b32 v29, v31')
    A('v_add_f32 v29, v29, v31')
    A('s_waitcnt lgkmcnt(0)')
    A('s_barrier')
    for i in (7, 9, 11, 13, 15):
        x = i // 2
        A(f'{MFMA} {v(64+(x&3)*16,16)}, {v(F(bufs[i]),4)}, {v(168+(x>>2)*4,4)}, {v(64+(x&3)*16,16)}')
    A(f'v_mov_b32 v30, {f2u(2.0**(-10 if C.force_fb else 40)):#x}')
    A('v_cmp_nlt_f32 vcc, v29, v30')
    A('s_cbranch_vccnz L_fb')
    A.label('L_fb_ret')
    A('v_rcp_f32 v29, v29')
    A(f's_add_u32 s52, s52, {OF_OFF}')
    A(f's_add_u32 s53, s53, {OF_OFF}')
    for dt in range(4):
        c = 64 + dt * 16
        for r in range(16): A(f'v_mul_f32 v{c+r}, v{c+r}, v29')
        for r in range(8): A(f'v_cvt_pk_bf16_f32 v{c+r}, v{c+2*r}, v{c+2*r+1}')
        for aa in range(2):
            kk = dt * 2 + aa
            A(f'buffer_store_dwordx4 {v(c+4*aa,4)}, v1, s[12:15], s{52+kk//4} offen offset:{(kk%4)*1024}')
    A('s_lshl_b32 s55, s30, 4')
    A('s_add_u32 s55, s55, s58')
    A('s_lshl_b32 s55, s55, 7')
    A(f's_add_u32 s55, s55, {OFL}')
    A('s_lshl_b32 s39, s38, 2')
    publish(A, 'L_opub', 55, 39)
    stamp(A, 10)
    A('s_lshl_b32 s39, s40, 13')
    A(f's_add_u32 s39, s39, {BW}')
    A('v_add_u32 v14, s39, v1')
    A('v_bfe_u32 v12, v0, 2, 2')
    A('v_lshl_add_u32 v10, v11, 2, v12')
    A('v_lshlrev_b32 v10, 8, v10')
    A('v_and_b32 v13, 1, v0')
    A('v_lshl_add_u32 v10, v13, 5, v10')
    A('v_bfe_u32 v13, v0, 4, 1')
    A('v_lshl_add_u32 v10, v13, 4, v10')
    A('v_bfe_u32 v13, v0, 1, 1')
    A('v_lshl_add_u32 v10, v13, 3, v10')
    A('s_lshl_b32 s39, s41, 1')
    for mt in range(2):
        A(f's_add_u32 s42, s39, {mt}')
        A('v_xor_b32 v13, s42, v12')
        A(f'v_lshl_add_u32 v{18+mt}, v13, 6, v10')
    A('s_lshl_b32 s52, s50, 18')
    A('s_lshl_b32 s39, s37, 12')
    A('s_add_u32 s52, s52, s39')
    A(f's_add_u32 s52, s52, {PT_OFF}')
    A('s_lshl_b32 s39, s33, 14')
    A('s_add_u32 s53, s52, s39')
    A('s_lshl_b32 s55, s50, 2')
    A('s_add_u32 s55, s55, s37')
    A('s_lshl_b32 s55, s55, 7')
    A(f's_add_u32 s55, s55, {XFL}')
    gemm_compute(A, 'L3', lambda ks, nt: (14, nt * 4096 + ks * 1024), 8, last_barrier=False, st0=11)
    stamp(A, 12)
    for d in range(4):
        A(f's_cmp_eq_u32 s33, {d}')
        A(f's_cbranch_scc1 L3_st{d}')
        A(f's_add_u32 s54, s53, {d*65536}')
        for q in range(4):
            A(f'buffer_store_dwordx4 {v(64+d*16+q*4,4)}, v1, s[12:15], s54 offen offset:{q*1024} sc1')
        A(f's_branch L3_sn{d}')
        A.label(f'L3_st{d}')
        for r in range(16): A(f'v_mov_b32 v{128+r}, v{64+d*16+r}')
        A.label(f'L3_sn{d}')
    A('s_lshl_b32 s39, s33, 2')
    A('v_mov_b32 v20, s39')
    A('v_mov_b32 v21, 1')
    A('s_waitcnt vmcnt(0)')
    stamp(A, 13)
    A('s_mov_b64 exec, 1')
    A('buffer_store_dword v21, v20, s[12:15], s55 offen sc1')
    A('s_mov_b64 exec, -1')
    A('v_and_b32 v20, 3, v0')
    A('v_lshlrev_b32 v20, 2, v20')
    poll(A, 'L_xpoll', 20, 55, 22)
    stamp(A, 14)
    A('s_lshl_b32 s39, s33, 16')
    A('s_add_u32 s52, s52, s39')
    for k in range(1, 4):
        A(f's_add_u32 s39, s33, {k}')
        A('s_and_b32 s39, s39, 3')
        A('s_lshl_b32 s39, s39, 14')
        A('s_add_u32 s54, s52, s39')
        for q in range(4):
            A(f'buffer_load_dwordx4 {v(128+k*16+q*4,4)}, v1, s[12:15], s54 offen offset:{q*1024} sc1')
    srd(A, 16, 70, 71, 512 * 4096)
    A('s_lshl_b32 s39, s34, 7')
    A('s_lshl_b32 s42, s40, 6')
    A('s_add_u32 s39, s39, s42')
    A('s_and_b32 s42, s33, 1')
    A('s_lshl_b32 s42, s42, 5')
    A('s_add_u32 s39, s39, s42')
    A('v_and_b32 v20, 31, v0')
    A('v_add_u32 v20, s39, v20')
    A('v_lshlrev_b32 v20, 12, v20')
    A('v_lshl_add_u32 v20, v11, 5, v20')
    A('s_lshl_b32 s39, s32, 11')
    A('s_lshl_b32 s42, s35, 8')
    A('s_add_u32 s39, s39, s42')
    A('s_lshl_b32 s42, s41, 7')
    A('s_add_u32 s39, s39, s42')
    A('s_lshr_b32 s42, s33, 1')
    A('s_lshl_b32 s42, s42, 6')
    A('s_add_u32 s39, s39, s42')
    for k in range(1, 4):
        A(f's_waitcnt vmcnt({4*(3-k)})')
        for r in range(16): A(f'v_add_f32 v{128+r}, v{128+r}, v{128+k*16+r}')
    for r in range(8): A(f'v_cvt_pk_bf16_f32 v{128+r}, v{128+2*r}, v{128+2*r+1}')
    A('buffer_store_dwordx4 v[128:131], v20, s[16:19], s39 offen')
    A('buffer_store_dwordx4 v[132:135], v20, s[16:19], s39 offen offset:16')
    if C.stamps: A('s_waitcnt vmcnt(0)')
    stamp(A, 6); stamp(A, 7, True); stamp_flush(A)
    A('s_endpgm')
    A.label('L_fb')
    A('s_lshl_b32 s39, s58, 2')
    A('s_add_u32 s39, s39, s33')
    A('s_lshl_b32 s39, s39, 18')
    A('s_add_u32 s20, s62, s39'); A('s_addc_u32 s21, s63, 0')
    A('s_add_u32 s24, s64, s39'); A('s_addc_u32 s25, s65, 0')
    A('s_mov_b32 s22, 262144'); A('s_mov_b32 s23, 0x20000')
    A('s_mov_b32 s26, 262144'); A('s_mov_b32 s27, 0x20000')
    A('v_and_b32 v10, 31, v0')
    A('v_lshlrev_b32 v12, 8, v10')
    A('v_lshl_add_u32 v12, v11, 4, v12')
    A('v_lshlrev_b32 v13, 1, v10')
    A('v_lshl_add_u32 v13, v11, 10, v13')
    for i in range(64): A(f'v_mov_b32 v{64+i}, 0')
    A('v_mov_b32 v28, 0xff7fffff')
    A('v_mov_b32 v29, 0')
    A('s_mov_b32 s46, 0')
    A.label('L_fb_loop')
    A('s_add_u32 s47, s46, 4096')
    for kk in range(8): A(f'buffer_load_dwordx4 {v(192+4*kk,4)}, v12, s[20:23], s46 offen offset:{kk*32}')
    for ks in range(2):
        for dt in range(4):
            for j in range(8):
                r = (144 if ks == 0 else 176) + dt * 4 + j // 2
                A(f'buffer_load_short_d16{"_hi" if j & 1 else ""} v{r}, v13, s[24:27], s{46+ks} offen offset:{((j&3)+8*(j>>2))*256+dt*64}')
        A('s_waitcnt vmcnt(0)')
    for kk in range(8): A(f'{MFMA} {v(128,16)}, {v(192+4*kk,4)}, {v(32+kk*4,4)}, {v(128,16) if kk else 0}')
    A('v_max3_f32 v30, v128, v129, v130')
    for i in range(3, 15, 2): A(f'v_max3_f32 v30, v30, v{128+i}, v{128+i+1}')
    A('v_max_f32 v30, v30, v143')
    A('v_mov_b32 v31, v30')
    A('v_permlane32_swap_b32 v30, v31')
    A('v_max3_f32 v30, v30, v31, v28')
    A('v_sub_f32 v31, v28, v30')
    A('v_exp_f32 v31, v31')
    A('v_mov_b32 v28, v30')
    for i in range(16): A(f'v_sub_f32 v{128+i}, v{128+i}, v30')
    for i in range(16): A(f'v_exp_f32 v{128+i}, v{128+i}')
    A('v_mul_f32 v29, v29, v31')
    for i in range(16): A(f'v_add_f32 v29, v29, v{128+i}')
    for i in range(8): A(f'v_cvt_pk_bf16_f32 v{160+i}, v{128+2*i}, v{128+2*i+1}')
    for i in range(64): A(f'v_mul_f32 v{64+i}, v{64+i}, v31')
    for ks in range(2):
        for dt in range(4):
            A(f'{MFMA} {v(64+dt*16,16)}, {v((144 if ks == 0 else 176)+dt*4,4)}, {v(160+ks*4,4)}, {v(64+dt*16,16)}')
    A('s_add_u32 s46, s46, 8192')
    A('s_cmp_lt_u32 s46, 262144')
    A('s_cbranch_scc1 L_fb_loop')
    A('v_mov_b32 v31, v29')
    A('v_permlane32_swap_b32 v29, v31')
    A('v_add_f32 v29, v29, v31')
    A('s_branch L_fb_ret')

def main(out):
    A = Asm()
    name = NAME + '_kernel'
    A(f'.globl {name}'); A('.p2align 8'); A(f'.type {name},@function'); A.label(name)
    A('s_cmp_ge_u32 s2, 256')
    A('s_cbranch_scc1 L_end')
    A('s_load_dwordx8 s[60:67], s[0:1], 0')
    A('s_load_dwordx2 s[68:69], s[0:1], 32')
    A('s_load_dwordx2 s[40:41], s[0:1], 40')
    A('s_load_dwordx8 s[44:51], s[0:1], 48')
    A('s_load_dwordx2 s[70:71], s[0:1], 80')
    A('s_load_dwordx4 s[72:75], s[0:1], 88')
    A('s_and_b32 s30, s2, 7')
    A('s_lshr_b32 s31, s2, 3')
    A('s_lshr_b32 s32, s30, 2')
    A('s_and_b32 s33, s30, 3')
    A('v_lshrrev_b32 v1, 6, v0')
    A('v_and_b32 v0, 63, v0')
    A('v_readfirstlane_b32 s37, v1')
    A('s_lshr_b32 s36, s37, 2')
    A('s_and_b32 s37, s37, 3')
    A('s_waitcnt lgkmcnt(0)')
    A('s_cmp_eq_u32 s32, 0')
    A('s_cselect_b64 s[60:61], s[60:61], s[40:41]')
    for i in range(4): A(f's_cselect_b64 s[{62+2*i}:{63+2*i}], s[{62+2*i}:{63+2*i}], s[{44+2*i}:{45+2*i}]')
    srd(A, 12, 74, 75, WS_BYTES)
    if C.stamps:
        for k in range(16): A(f's_mov_b32 s{76+k}, 0')
    stamp(A, 0); stamp(A, 1, True)
    A('s_cmp_eq_u32 s36, 0')
    A('s_cbranch_scc1 L_comp')
    loader(A)
    A.label('L_comp')
    compute(A)
    A.label('L_end')
    A('s_endpgm')
    body = A.finish()
    txt = HDR + f'; @launch grid=(256,1,1) block=(512,1,1) lds={MODE_LDS+256}\n'
    txt += '.amdgcn_target "amdgcn-amd-amdhsa--gfx950"\n.text\n' + body + '\n.section .rodata,"a"\n'
    txt += f'''.p2align 6
.amdhsa_kernel {name}
  .amdhsa_next_free_vgpr 232
  .amdhsa_next_free_sgpr 100
  .amdhsa_accum_offset 232
  .amdhsa_group_segment_fixed_size 0
  .amdhsa_kernarg_size 104
  .amdhsa_user_sgpr_count 2
  .amdhsa_user_sgpr_kernarg_segment_ptr 1
  .amdhsa_system_sgpr_workgroup_id_x 1
.end_amdhsa_kernel
'''
    open(out, 'w').write(txt)

if __name__ == '__main__':
    out = sys.argv[1] if len(sys.argv) > 1 else f'cdna_kernels/{NAME}.s'
    for o in sys.argv[2:]:
        k, val = o.split('=')
        cur = getattr(C, k)
        setattr(C, k, int(val) if isinstance(cur, int) else (' ' + val if val else ''))
    main(out)
```
